```python
import torch

def _softmax(x, axis=-1):
    return torch.softmax(x, dim=axis)
def _gelu(x):
    return torch.nn.functional.gelu(x, approximate="tanh")
def _silu(x):
    return torch.nn.functional.silu(x)
def _sigmoid(x):
    return torch.sigmoid(x)
def _layernorm(x, axis=-1, eps=1e-5):
    m = x.mean(dim=axis, keepdim=True)
    v = x.var(dim=axis, keepdim=True, unbiased=False)
    return (x - m) / torch.sqrt(v + eps)
def _scatter_add(tgt, idx, src, axis=0):
    return tgt.clone().index_add_(axis, idx, src)
def _segment_sum(src, seg, n):
    out = torch.zeros((n,) + src.shape[1:], dtype=src.dtype)
    return out.index_add_(0, seg, src)
def _pad(x, pw):
    flat = tuple(v for pair in reversed(pw) for v in pair)
    return torch.nn.functional.pad(x, flat)

kernel_name = 'gather_scatter__edge_featured_mpnn_gatedgcn__graph'

def setup_inputs():

    _w = (lambda a: (lambda t: t.to(torch.bfloat16) if t.is_floating_point() else t)(torch.as_tensor(a)))
    N, deg, D, De = 12500, 32, 128, max(4, 1)
    E = N * deg
    return {
        "x": _w((lambda *s: torch.randn(*s, dtype=torch.bfloat16) * 0.4)(N, D)),
        "e_attr": _w((lambda *s: torch.randn(*s, dtype=torch.bfloat16) * 0.8)(E, De)),
        "src": _w((lambda lo, hi, *s: torch.randint(lo, hi, s))(0, N, E).to(torch.int64)),
        "dst": _w((lambda lo, hi, *s: torch.randint(lo, hi, s))(0, N, E).to(torch.int64)),
        "w_a": _w((lambda *s: torch.randn(*s, dtype=torch.bfloat16) * 0.4)(D, D)),
        "w_b": _w((lambda *s: torch.randn(*s, dtype=torch.bfloat16) * 0.4)(D, D)),
        "w_c": _w((lambda *s: torch.randn(*s, dtype=torch.bfloat16) * 0.8)(De, D)),
        "w_u": _w((lambda *s: torch.randn(*s, dtype=torch.bfloat16) * 0.05)(D, D)),
        "w_v": _w((lambda *s: torch.randn(*s, dtype=torch.bfloat16) * 0.05)(D, D)),
    }

def reference(x, e_attr, src, dst, w_a, w_b, w_c, w_u, w_v):
    N, D = x.shape
    hv = x @ w_v
    g = x[dst] @ w_a + x[src] @ w_b + e_attr @ w_c
    eta = _sigmoid(g)
    denom = _segment_sum(eta, dst, N) + 1e-6
    eta_n = eta / denom[dst]
    agg = _segment_sum(eta_n * hv[src], dst, N)
    z = x @ w_u + agg
    relu_z = torch.where(z > 0, z, 0 * z)
    return x + relu_z
```

```python
CAP = 7680
SRC_O = 0
EAT_O = CAP * 4
DEN_O = EAT_O + CAP * 8
NUM_D = 196 * 128
APR_O = DEN_O + 2 * NUM_D
SM = APR_O + 196 * 64
CNT_R, CUR_R, NBASE_R, H2_R, BASE2_R, ORDER_R, DEGS_R, GST_R, MISC_R = 0, 1024, 2048, 3072, 4096, 5120, 6144, 7168, 7424
LDS_TOTAL = SM + 7488
VGPRS = 96
NG = 49

def gen_k2(G):
    e, c, i, srd = G.e, G.c, G.i, G.srd
    N, E, NPB, CH = G.N, G.E, G.NPB, G.CH
    G.kernel_header("k2_main_kernel")
    i("s_cmp_ge_u32 s2, 256")
    i("s_cbranch_scc1 K2_END")
    G.load_kernargs()
    i("v_lshrrev_b32 v1, 6, v0")
    i("s_and_b32 s28, s2, 3                  ; q")
    i("v_readfirstlane_b32 s3, v1")
    i("s_lshr_b32 s29, s2, 3")
    i("s_lshl_b32 s29, s29, 1")
    i("s_bfe_u32 s30, s2, 0x10002            ; (id>>2)&1")
    i("s_add_u32 s29, s29, s30               ; bucket")
    i(f"s_mul_i32 s30, s29, {NPB}")
    i(f"s_sub_u32 s31, {N}, s30")
    i(f"s_min_u32 s31, s31, {NPB}             ; nvalid")
    i("s_waitcnt lgkmcnt(0)")
    i(f"s_add_u32 s60, s26, {G.OFFS_OFF}")
    i("s_addc_u32 s61, s27, 0")
    i("s_lshl_b32 s62, s29, 9")
    i("s_lshl_b32 s63, s3, 5")
    i("s_add_u32 s62, s62, s63")
    i("s_add_u32 s63, s62, 512")
    i("s_load_dwordx8 s[64:71], s[60:61], s62")
    i("s_load_dwordx8 s[72:79], s[60:61], s63")
    srd(32, 26, G.T_OFF, G.T_SZ)
    srd(36, 26, G.AU_OFF, G.AU_SZ)
    srd(40, 26, G.KEY_OFF, G.KEY_SZ)
    srd(44, 26, G.PAY_OFF, G.PAY_SZ)
    srd(48, 4, 0, N * 256)
    srd(52, 22, 0, N * 256)
    srd(56, 16, 0, 1024)
    i("v_and_b32 v1, 63, v0                  ; lane")
    i("v_and_b32 v9, 15, v1                  ; j")
    i("v_lshrrev_b32 v8, 4, v1               ; g'")
    c("wc loads: row k, dword at (32q + 2j)*2 bytes")
    i("s_lshl_b32 s80, s28, 6")
    i("v_lshl_add_u32 v10, v9, 2, s80")
    for k in range(4):
        i(f"buffer_load_dword v{20+k}, v10, s[56:59], 0 offen offset:{k*256}")
    c("A' staging loads: task = tid + 1024*it ; n = task>>4 ; AU off = (base+n)*512 + q*128 + j*8")
    i("v_lshrrev_b32 v10, 4, v0")
    i("v_lshlrev_b32 v10, 9, v10")
    i("v_lshl_add_u32 v10, v9, 3, v10")
    i("s_lshl_b32 s80, s30, 9")
    i("s_lshl_b32 s81, s28, 7")
    i("s_add_u32 s80, s80, s81")
    for it in range(4):
        i(f"buffer_load_dwordx2 v[{24+2*it}:{25+2*it}], v10, s[36:39], s80 offen")
        if it < 3: i(f"v_add_u32 v10, {64*512}, v10")
    c("zero ACC")
    i("v_mov_b32 v32, 0")
    i("v_mov_b32 v33, 0")
    i("v_mov_b32 v34, 0")
    i("v_mov_b32 v35, 0")
    i("v_lshlrev_b32 v11, 4, v0")
    i(f"v_add_u32 v11, {DEN_O}, v11")
    for it in range(3):
        i(f"ds_write_b128 v11, v[32:35] offset:{it*16384}")
    i(f"v_cmp_gt_u32 vcc, {2*NUM_D//16 - 3072}, v0")
    i("s_mov_b64 exec, vcc")
    i("ds_write_b128 v11, v[32:35] offset:49152")
    i("s_mov_b64 exec, -1")
    c("MISC/GST[0] zero (all threads write same value)")
    i(f"v_mov_b32 v11, {SM}")
    i(f"ds_write_b32 v11, v32 offset:{MISC_R}")
    i(f"ds_write_b32 v11, v32 offset:{GST_R}")
    c("persistent lane constants")
    i("v_lshl_add_u32 v2, v9, 3, s81")
    i("v_mov_b32 v3, 0x3f80")
    i("v_lshlrev_b32 v80, 2, v1               ; lane*4")
    i("v_lshlrev_b32 v81, 3, v1               ; lane*8")
    i("v_mov_b32 v82, 1")
    i("v_lshlrev_b32 v83, 2, v0")
    i(f"v_add_u32 v83, {SM}, v83")
    c("wc frags")
    i(f"s_mov_b32 s82, 0x{G.NLOG2E:08x}")
    i("s_waitcnt vmcnt(4)")
    for b in range(2):
        for k in range(4):
            f = 36 + k
            if b == 0: i(f"v_lshlrev_b32 v{f}, 16, v{20+k}")
            else:      i(f"v_and_b32 v{f}, 0xffff0000, v{20+k}")
            i(f"v_mul_f32 v{f}, s82, v{f}")
        B = 12 + 4*b
        i(f"v_cvt_pk_bf16_f32 v{B}, v36, v37")
        i(f"v_cvt_pk_bf16_f32 v{B+1}, v38, v39")
        i(f"v_lshlrev_b32 v40, 16, v{B}")
        i(f"v_and_b32 v41, 0xffff0000, v{B}")
        i(f"v_lshlrev_b32 v42, 16, v{B+1}")
        i(f"v_and_b32 v43, 0xffff0000, v{B+1}")
        for k in range(4):
            i(f"v_sub_f32 v{36+k}, v{36+k}, v{40+k}")
        i(f"v_cvt_pk_bf16_f32 v{B+2}, v36, v37")
        i(f"v_cvt_pk_bf16_f32 v{B+3}, v38, v39")
    i("v_cmp_eq_u32 vcc, 0, v8")
    i("s_nop 1")
    for r in range(12, 20):
        i(f"v_cndmask_b32 v{r}, 0, v{r}, vcc")
    c("A' staging writes")
    i("s_mov_b32 s82, 0x05040100")
    i("v_lshlrev_b32 v11, 2, v0")
    i(f"v_add_u32 v11, {APR_O}, v11")
    for it in range(4):
        i(f"s_waitcnt vmcnt({3-it})")
        i(f"v_perm_b32 v10, v{25+2*it}, v{24+2*it}, s82")
        if it == 3:
            i(f"v_cmp_gt_u32 vcc, {196*16-3072}, v0")
            i("s_mov_b64 exec, vcc")
        i(f"ds_write_b32 v11, v10 offset:{it*4096}")
    i("s_mov_b64 exec, -1")
    c("descriptors: base_s (s64..71), len_s (s72..79)")
    i("s_waitcnt lgkmcnt(0)")
    i(f"s_mul_i32 s80, s3, {8*CH}")
    i("s_mov_b32 s82, 0")
    for s in range(8):
        i(f"s_sub_u32 s{72+s}, s{72+s}, s{64+s}")
        i(f"s_add_u32 s{64+s}, s{64+s}, s80")
        i(f"s_max_u32 s82, s82, s{72+s}")
        if s < 7: i(f"s_add_u32 s80, s80, {CH}")
    i("s_barrier")
    i("v_mov_b32 v10, s82")
    i(f"v_mov_b32 v11, {SM}")
    i(f"ds_max_u32 v11, v10 offset:{MISC_R}")
    i("s_mov_b32 s80, 0                      ; lo")
    i("s_mov_b32 s81, 0x100000               ; R")
    e("K2_ROUND:")
    i("v_mov_b32 v10, 0")
    i("s_cmp_ge_u32 s3, 4")
    i("s_cbranch_scc1 K2_Z_SKIP")
    i(f"ds_write_b32 v83, v10 offset:{CNT_R}")
    i(f"ds_write_b32 v83, v10 offset:{CUR_R}")
    i(f"ds_write_b32 v83, v10 offset:{H2_R}")
    e("K2_Z_SKIP:")
    c("lim_s = min(len_s, lo+R) -> s88..95 ; s96 = wave max lim")
    i("s_add_u32 s97, s80, s81")
    i("s_mov_b32 s96, 0")
    for s in range(8):
        i(f"s_min_u32 s{88+s}, s{72+s}, s97")
        i(f"s_max_u32 s96, s96, s{88+s}")
    i("s_waitcnt lgkmcnt(0)")
    i("s_barrier")
    def seg_mask(s):
        i("s_mov_b64 exec, -1")
        i(f"s_sub_i32 s98, s{88+s}, s97")
        i("v_cmp_gt_i32 vcc, s98, v1")
        i("s_mov_b64 exec, vcc")
    i("s_mov_b32 s97, s80")
    e("K2_PA:")
    i("s_cmp_ge_u32 s97, s96")
    i("s_cbranch_scc1 K2_PA_END")
    for s in range(8):
        seg_mask(s)
        i(f"s_add_u32 s99, s{64+s}, s97")
        i("s_lshl_b32 s99, s99, 2")
        i(f"buffer_load_dword v{20+s}, v80, s[40:43], s99 offen")
    for s in range(8):
        seg_mask(s)
        i(f"s_waitcnt vmcnt({7-s})")
        i(f"v_lshrrev_b32 v10, 14, v{20+s}")
        i("v_and_b32 v10, 0x3fc, v10")
        i(f"v_add_u32 v10, {SM}, v10")
        i(f"ds_add_u32 v10, v82 offset:{CNT_R}")
    i("s_mov_b64 exec, -1")
    i("s_add_u32 s97, s97, 64")
    i("s_branch K2_PA")
    e("K2_PA_END:")
    i("s_waitcnt lgkmcnt(0)")
    i("s_barrier")
    c("S1: degree bins.  v84 = d, v85 = bin*4+SM, v86 = r2, v87 = pos")
    i(f"v_cmp_gt_u32 vcc, {NPB}, v0")
    i("s_mov_b64 s[100:101], vcc")
    i("s_cmp_ge_u32 s3, 4")
    i("s_cbranch_scc1 K2_S1_SKIP")
    i("s_mov_b64 exec, s[100:101]")
    i(f"ds_read_b32 v84, v83 offset:{CNT_R}")
    i("s_waitcnt lgkmcnt(0)")
    i("v_min_u32 v85, 0xff, v84")
    i("v_lshlrev_b32 v85, 2, v85")
    i(f"v_add_u32 v85, {SM}, v85")
    i(f"ds_add_rtn_u32 v86, v85, v82 offset:{H2_R}")
    i("s_waitcnt lgkmcnt(0)")
    i("s_mov_b64 exec, -1")
    e("K2_S1_SKIP:")
    i("s_barrier")
    i("s_cmp_lg_u32 s3, 0")
    i("s_cbranch_scc1 K2_S2_SKIP")
    i("v_lshlrev_b32 v10, 4, v1")
    i(f"v_add_u32 v10, {SM}, v10")
    i(f"ds_read_b128 v[20:23], v10 offset:{H2_R}")
    i("s_waitcnt lgkmcnt(0)")
    i("v_add_u32 v24, v20, v21")
    i("v_add3_u32 v24, v24, v22, v23")
    G.wave_scan(24)
    i(f"v_sub_u32 v31, {NPB}, v24")
    i("v_add_u32 v30, v31, v23")
    i("v_add_u32 v29, v30, v22")
    i("v_add_u32 v28, v29, v21")
    i(f"ds_write_b128 v10, v[28:31] offset:{BASE2_R}")
    i("s_waitcnt lgkmcnt(0)")
    e("K2_S2_SKIP:")
    i("s_barrier")
    i("s_cmp_ge_u32 s3, 4")
    i("s_cbranch_scc1 K2_S3_SKIP")
    i("s_mov_b64 exec, s[100:101]")
    i(f"ds_read_b32 v87, v85 offset:{BASE2_R}")
    i("s_waitcnt lgkmcnt(0)")
    i("v_add_u32 v87, v87, v86")
    i("v_lshlrev_b32 v10, 2, v87")
    i(f"v_add_u32 v10, {SM}, v10")
    i(f"ds_write_b32 v10, v0 offset:{ORDER_R}")
    i(f"ds_write_b32 v10, v84 offset:{DEGS_R}")
    i("s_waitcnt lgkmcnt(0)")
    i("s_mov_b64 exec, -1")
    e("K2_S3_SKIP:")
    i("s_barrier")
    i("s_cmp_lg_u32 s3, 0")
    i("s_cbranch_scc1 K2_S4_SKIP")
    i("v_lshlrev_b32 v10, 4, v1")
    i(f"v_add_u32 v10, {SM}, v10")
    i(f"ds_read_b128 v[20:23], v10 offset:{DEGS_R}")
    i(f"v_cmp_gt_u32 vcc, {NG}, v1")
    i("s_waitcnt lgkmcnt(0)")
    i("v_max_u32 v24, v20, v21")
    i("v_max3_u32 v24, v24, v22, v23")
    i("v_add_u32 v24, 3, v24")
    i("v_lshrrev_b32 v24, 2, v24")
    i("v_cndmask_b32 v24, 0, v24, vcc")
    G.wave_scan(24)
    i(f"v_add_u32 v10, {SM}, v80")
    i("s_mov_b64 exec, vcc")
    i(f"ds_write_b32 v10, v24 offset:{GST_R+4}")
    i("s_mov_b64 exec, -1")
    i("s_waitcnt lgkmcnt(0)")
    e("K2_S4_SKIP:")
    i("s_barrier")
    c("v7 = GST[lane+1] (lanes>=49 -> big); s83 = S_tot")
    i(f"v_add_u32 v10, {SM}, v80")
    i(f"ds_read_b32 v7, v10 offset:{GST_R+4}")
    i(f"v_cmp_gt_u32 vcc, {NG}, v1")
    i("s_waitcnt lgkmcnt(0)")
    i("v_cndmask_b32 v7, -1, v7, vcc")
    i("s_nop 0")
    i(f"v_readlane_b32 s83, v7, {NG-1}")
    i("s_nop 3")
    i(f"s_cmp_gt_u32 s83, {CAP//16}")
    i("s_cbranch_scc0 K2_FIT")
    i("s_mov_b32 s81, 8")
    i("s_barrier")
    i("s_branch K2_ROUND")
    e("K2_FIT:")
    i("s_cmp_ge_u32 s3, 4")
    i("s_cbranch_scc1 K2_S5_SKIP")
    i("s_mov_b64 exec, s[100:101]")
    i("v_and_b32 v10, 0xfffffffc, v87         ; (pos>>2)*4")
    i(f"v_add_u32 v10, {SM}, v10")
    i(f"ds_read_b32 v20, v10 offset:{GST_R}")
    i(f"ds_read_b32 v21, v10 offset:{GST_R+4}")
    i("v_and_b32 v22, 3, v87")
    i("v_lshlrev_b32 v22, 2, v22")
    i("s_waitcnt lgkmcnt(0)")
    i("v_lshl_add_u32 v22, v20, 4, v22        ; nbase")
    i(f"ds_write_b32 v83, v22 offset:{NBASE_R}")
    i("v_sub_u32 v21, v21, v20")
    i("v_lshlrev_b32 v21, 2, v21              ; kend")
    i(f"v_mov_b32 v24, {G.DUMMY_ROW*512}")
    i("v_mov_b32 v26, 0")
    i("v_mov_b32 v27, 0")
    e("K2_PAD:")
    i("v_cmp_lt_u32 vcc, v84, v21")
    i("s_and_b64 exec, exec, vcc")
    i("s_cbranch_execz K2_PAD_END")
    i("v_lshrrev_b32 v23, 2, v84")
    i("v_lshl_add_u32 v23, v23, 4, v22")
    i("v_and_b32 v25, 3, v84")
    i("v_add_u32 v23, v23, v25                ; slot")
    i("v_lshlrev_b32 v25, 2, v23")
    i("v_lshlrev_b32 v23, 3, v23")
    i(f"ds_write_b32 v25, v24 offset:{SRC_O}")
    i(f"ds_write_b64 v23, v[26:27] offset:{EAT_O}")
    i("v_add_u32 v84, 1, v84")
    i("s_branch K2_PAD")
    e("K2_PAD_END:")
    i("s_mov_b64 exec, -1")
    i("s_waitcnt lgkmcnt(0)")
    e("K2_S5_SKIP:")
    i("s_barrier")
    i("s_mov_b32 s97, s80")
    e("K2_PB:")
    i("s_cmp_ge_u32 s97, s96")
    i("s_cbranch_scc1 K2_PB_END")
    for s in range(8):
        seg_mask(s)
        i(f"s_add_u32 s99, s{64+s}, s97")
        i("s_lshl_b32 s98, s99, 2")
        i("s_lshl_b32 s99, s99, 3")
        i(f"buffer_load_dword v{20+s}, v80, s[40:43], s98 offen")
        i(f"buffer_load_dwordx2 v[{28+2*s}:{29+2*s}], v81, s[44:47], s99 offen")
    for s in range(8):
        seg_mask(s)
        i(f"s_waitcnt vmcnt({15-2*s})")
        i(f"v_lshrrev_b32 v10, 14, v{20+s}")
        i("v_and_b32 v10, 0x3fc, v10")
        i(f"v_add_u32 v10, {SM}, v10")
        i(f"ds_add_rtn_u32 v{44+s}, v10, v82 offset:{CUR_R}")
        i(f"ds_read_b32 v{52+s}, v10 offset:{NBASE_R}")
    i("s_waitcnt vmcnt(0) lgkmcnt(0)")
    for s in range(8):
        seg_mask(s)
        i(f"v_lshrrev_b32 v10, 2, v{44+s}")
        i(f"v_lshl_add_u32 v10, v10, 4, v{52+s}")
        i(f"v_and_b32 v11, 3, v{44+s}")
        i("v_add_u32 v10, v10, v11                ; slot")
        i(f"v_and_b32 v{20+s}, 0xffff, v{20+s}")
        i(f"v_lshlrev_b32 v{20+s}, 9, v{20+s}")
        i(f"v_lshlrev_b32 v{44+s}, 2, v10")
        i(f"v_lshlrev_b32 v{52+s}, 3, v10")
        i(f"ds_write_b32 v{44+s}, v{20+s} offset:{SRC_O}")
        i(f"ds_write_b64 v{52+s}, v[{28+2*s}:{29+2*s}] offset:{EAT_O}")
    i("s_mov_b64 exec, -1")
    i("s_add_u32 s97, s97, 64")
    i("s_branch K2_PB")
    e("K2_PB_END:")
    i("s_waitcnt lgkmcnt(0)")
    i("s_barrier")
    BOP = (12, 16); CC = (20, 24); EA = 28; SR = 32; DD = (36, 40)
    DEN = (44, 45); NUM = (46, 47); GS = (48, 56, 64)
    i("s_mul_i32 s84, s83, s3")
    i("s_lshr_b32 s84, s84, 4")
    i("s_add_u32 s85, s3, 1")
    i("s_mul_i32 s85, s83, s85")
    i("s_lshr_b32 s85, s85, 4")
    i("s_cmp_ge_u32 s84, s85")
    i("s_cbranch_scc1 K2_MAIN_END")
    i("v_cmp_ge_u32 vcc, s84, v7")
    i("s_bcnt1_i32_b64 s86, vcc               ; group")
    i("s_lshl_b32 s97, s84, 6")
    i("v_lshl_add_u32 v4, v8, 4, s97")
    i("s_lshl_b32 s97, s84, 7")
    i(f"s_add_u32 s97, s97, {EAT_O}")
    i("v_lshl_add_u32 v5, v9, 3, s97")
    def gather(gs):
        for r in range(4):
            i(f"v_add_u32 v{SR+r}, v{SR+r}, v2")
        for r in range(4):
            i(f"buffer_load_dwordx2 v[{gs+2*r}:{gs+2*r+1}], v{SR+r}, s[32:35], 0 offen")
    i(f"ds_read_b128 v[{SR}:{SR+3}], v4")
    i("s_waitcnt lgkmcnt(0)")
    gather(GS[0])
    i(f"ds_read_b128 v[{SR}:{SR+3}], v4 offset:64")
    i("s_waitcnt lgkmcnt(0)")
    gather(GS[1])
    i(f"ds_read_b128 v[{SR}:{SR+3}], v4 offset:128")
    i(f"ds_read_b64 v[{EA}:{EA+1}], v5")
    i(f"ds_read_b64 v[{EA+2}:{EA+3}], v5")
    for r in DEN + NUM: i(f"v_mov_b32 v{r}, 0")
    def setup_group():
        c("group setup: s86 = g")
        i("v_readlane_b32 s87, v7, s86")
        i("s_lshl_b32 s97, s86, 4")
        i(f"s_add_u32 s97, s97, {SM}")
        i("v_lshl_add_u32 v72, v8, 2, s97")
        i(f"ds_read_b32 v72, v72 offset:{ORDER_R}")
        i("s_min_u32 s87, s87, s85")
        i("s_waitcnt lgkmcnt(0)")
        i("v_lshlrev_b32 v73, 6, v72")
        i("v_lshl_add_u32 v73, v9, 2, v73")
        i(f"v_add_u32 v73, {APR_O}, v73")
        i("ds_read_b32 v73, v73")
        i("v_lshlrev_b32 v6, 7, v72")
        i("v_lshl_add_u32 v6, v9, 3, v6")
        i(f"v_add_u32 v6, {DEN_O}, v6")
        i("s_waitcnt lgkmcnt(0)")
        i(f"v_lshlrev_b32 v{CC[0]}, 16, v73")
        i(f"v_and_b32 v{CC[1]}, 0xffff0000, v73")
        for b in range(2):
            for r in range(1, 4):
                i(f"v_mov_b32 v{CC[b]+r}, v{CC[b]}")
    setup_group()
    e("K2_LOOP:")
    for u in range(3):
        X = GS[u]; Z = GS[(u+2) % 3]
        e(f"K2_STEP{u}:")
        i("s_waitcnt lgkmcnt(0)")
        for b in range(2):
            i(f"v_mfma_f32_16x16x32_bf16 v[{DD[b]}:{DD[b]+3}], v[{EA}:{EA+3}], v[{BOP[b]}:{BOP[b]+3}], v[{CC[b]}:{CC[b]+3}]")
        gather(Z)
        i(f"ds_read_b128 v[{SR}:{SR+3}], v4 offset:{(u+3)*64}")
        i(f"ds_read_b64 v[{EA}:{EA+1}], v5 offset:{(u+1)*128}")
        i(f"ds_read_b64 v[{EA+2}:{EA+3}], v5 offset:{(u+1)*128}")
        if u == 2:
            i("v_add_u32 v4, 192, v4")
            i("v_add_u32 v5, 384, v5")
        i("s_waitcnt vmcnt(8)")
        for b in range(2):
            for r in range(4):
                i(f"v_dot2c_f32_bf16 v{DD[b]+r}, v{X+2*r+b}, v3")
        for b in range(2):
            for r in range(4):
                i(f"v_exp_f32 v{DD[b]+r}, v{DD[b]+r}")
        for b in range(2):
            for r in range(4):
                i(f"v_add_f32 v{DD[b]+r}, 1.0, v{DD[b]+r}")
        for b in range(2):
            for r in range(4):
                i(f"v_rcp_f32 v{DD[b]+r}, v{DD[b]+r}")
        i("s_add_u32 s84, s84, 1")
        for r in range(4):
            for b in range(2):
                i(f"v_add_f32 v{DEN[b]}, v{DEN[b]}, v{DD[b]+r}")
                i(f"v_fmac_f32 v{NUM[b]}, v{DD[b]+r}, v{X+2*r+b}")
        i("s_cmp_ge_u32 s84, s87")
        i(f"s_cbranch_scc1 K2_BND{u}")
        if u == 2: i("s_branch K2_LOOP")
    for u in range(3):
        e(f"K2_BND{u}:")
        i(f"ds_add_f32 v6, v{DEN[0]}")
        i(f"ds_add_f32 v6, v{DEN[1]} offset:4")
        i(f"ds_add_f32 v6, v{NUM[0]} offset:{NUM_D}")
        i(f"ds_add_f32 v6, v{NUM[1]} offset:{NUM_D+4}")
        i("s_cmp_ge_u32 s84, s85")
        i("s_cbranch_scc1 K2_MAIN_END")
        i("s_add_u32 s86, s86, 1")
        setup_group()
        for r in DEN + NUM: i(f"v_mov_b32 v{r}, 0")
        i(f"s_branch K2_STEP{(u+1)%3}")
    e("K2_MAIN_END:")
    i(f"v_mov_b32 v11, {SM}")
    i(f"ds_read_b32 v10, v11 offset:{MISC_R}")
    i("s_waitcnt vmcnt(0) lgkmcnt(0)")
    i("v_readfirstlane_b32 s82, v10")
    i("s_barrier")
    i("s_add_u32 s80, s80, s81")
    i("s_cmp_lt_u32 s80, s82")
    i("s_cbranch_scc1 K2_ROUND")
    i("v_lshrrev_b32 v10, 4, v0               ; n")
    i("v_lshlrev_b32 v11, 9, v10")
    i("v_lshl_add_u32 v11, v9, 3, v11")
    i("v_lshlrev_b32 v12, 8, v10")
    i("v_lshl_add_u32 v12, v9, 2, v12")
    i("v_lshlrev_b32 v13, 7, v10")
    i("v_lshl_add_u32 v13, v9, 3, v13")
    i(f"v_add_u32 v13, {DEN_O}, v13")
    i("s_lshl_b32 s80, s30, 9")
    i("s_lshl_b32 s81, s28, 7")
    i("s_add_u32 s80, s80, s81")
    i("s_lshl_b32 s82, s30, 8")
    i("s_lshl_b32 s81, s28, 6")
    i("s_add_u32 s82, s82, s81")
    for it in range(4):
        i(f"buffer_load_dwordx2 v[{20+2*it}:{21+2*it}], v11, s[36:39], s80 offen")
        i(f"buffer_load_dword v{28+it}, v12, s[48:51], s82 offen")
        i(f"ds_read_b64 v[{32+4*it}:{33+4*it}], v13 offset:{it*8192}")
        if it < 3:
            i(f"ds_read_b64 v[{34+4*it}:{35+4*it}], v13 offset:{it*8192+NUM_D}")
            i(f"s_add_u32 s80, s80, {64*512}")
            i(f"s_add_u32 s82, s82, {64*256}")
        else:
            i(f"ds_read_b64 v[{34+4*it}:{35+4*it}], v13 offset:{it*8192+NUM_D}")
    i(f"s_sub_u32 s82, s82, {3*64*256}")
    i("s_mov_b32 s83, 0x358637bd              ; 1e-6")
    i("s_waitcnt vmcnt(0) lgkmcnt(0)")
    for it in range(4):
        d = 32 + 4*it
        for b in range(2):
            i(f"v_add_f32 v{d+b}, s83, v{d+b}")
            i(f"v_rcp_f32 v{d+b}, v{d+b}")
            i(f"v_and_b32 v14, 0xffff0000, v{20+2*it+b}")
            i(f"v_fmac_f32 v14, v{d+b}, v{d+2+b}")
            i("v_max_f32 v14, 0, v14")
            if b == 0: i(f"v_lshlrev_b32 v15, 16, v{28+it}")
            else:      i(f"v_and_b32 v15, 0xffff0000, v{28+it}")
            i(f"v_add_f32 v{16+b}, v15, v14")
        i("v_cvt_pk_bf16_f32 v18, v16, v17")
        i(f"v_add_u32 v19, {64*it}, v10")
        i("v_cmp_gt_u32 vcc, s31, v19")
        i("s_mov_b64 exec, vcc")
        i("buffer_store_dword v18, v12, s[52:55], s82 offen")
        i("s_mov_b64 exec, -1")
        if it < 3: i(f"s_add_u32 s82, s82, {64*256}")
    e("K2_END:")
    i("s_endpgm")
```

```python
import sys, math

N = 12500; E = 400000; D = 128
NPB = 196; NB = 64
P = 128; CH = 3125
GB = 6
NBLK = (N + 15) // 16
GW = (NBLK + GB - 1) // GB
DUMMY_ROW = 12544
T_OFF = 0;           T_SZ = (DUMMY_ROW + 1) * 512
AU_OFF = 8 << 20;    AU_SZ = DUMMY_ROW * 512
KEY_OFF = 16 << 20;  KEY_SZ = E * 4
PAY_OFF = 18 << 20;  PAY_SZ = E * 8
OFFS_OFF = 22 << 20; OFFS_SZ = 65 * P * 4
MAGIC196 = (2**32 + 195) // 196
NLOG2E = 0xBFB8AA3B

L = []
def e(s=""): L.append(s)
def c(s): L.append("    ; " + s)
def i(s): L.append("    " + s)

def srd(base, ptr, off, size):
    if off:
        i(f"s_add_u32 s{base}, s{ptr}, {off}")
        i(f"s_addc_u32 s{base+1}, s{ptr+1}, 0")
    else:
        i(f"s_mov_b32 s{base}, s{ptr}")
        i(f"s_mov_b32 s{base+1}, s{ptr+1}")
    i(f"s_mov_b32 s{base+2}, {size}")
    i(f"s_mov_b32 s{base+3}, 0x00020000")

def wave_scan(v):
    for sh in (1, 2, 4, 8):
        i("s_nop 1")
        i(f"v_add_u32_dpp v{v}, v{v}, v{v} row_shr:{sh} row_mask:0xf bank_mask:0xf bound_ctrl:0")
    i("s_nop 1")
    i(f"v_add_u32_dpp v{v}, v{v}, v{v} row_bcast:15 row_mask:0xa bank_mask:0xf")
    i("s_nop 1")
    i(f"v_add_u32_dpp v{v}, v{v}, v{v} row_bcast:31 row_mask:0xc bank_mask:0xf")

def kernel_header(name):
    e(f".globl {name}")
    e(".p2align 8")
    e(f".type {name},@function")
    e(f"{name}:")

def kernel_desc(name, vgpr, sgpr):
    acc = (vgpr + 3) // 4 * 4
    e(f".amdhsa_kernel {name}")
    e(f"  .amdhsa_next_free_vgpr {vgpr}")
    e(f"  .amdhsa_next_free_sgpr {sgpr}")
    e(f"  .amdhsa_accum_offset {acc}")
    e("  .amdhsa_group_segment_fixed_size 0")
    e("  .amdhsa_kernarg_size 96")
    e("  .amdhsa_user_sgpr_count 2")
    e("  .amdhsa_user_sgpr_kernarg_segment_ptr 1")
    e("  .amdhsa_system_sgpr_workgroup_id_x 1")
    e(".end_amdhsa_kernel")

def load_kernargs():
    i("s_load_dwordx16 s[4:19], s[0:1], 0")
    i("s_load_dwordx8 s[20:27], s[0:1], 64")

def gen_k1():
    kernel_header("k1_prep_kernel")
    i(f"s_cmp_ge_u32 s2, {P+GW}")
    i("s_cbranch_scc1 K1_END")
    load_kernargs()
    i("v_lshrrev_b32 v1, 6, v0")
    i("s_nop 0")
    i("v_readfirstlane_b32 s3, v1")
    i(f"s_cmp_ge_u32 s2, {P}")
    i("s_waitcnt lgkmcnt(0)")
    i("s_cbranch_scc1 K1_GEMM")
    NI = 7
    srd(28, 10, 0, E*4)
    srd(32, 8, 0, E*4)
    srd(36, 6, 0, E*8)
    srd(40, 26, KEY_OFF, KEY_SZ)
    srd(44, 26, PAY_OFF, PAY_SZ)
    srd(48, 26, OFFS_OFF, OFFS_SZ)
    i(f"s_mul_i32 s52, s2, {CH}")
    i("v_lshlrev_b32 v1, 2, v0               ; tid*4")
    i("v_lshlrev_b32 v2, 3, v0               ; tid*8")
    i(f"v_cmp_gt_u32 s[54:55], {CH-6*512}, v0")
    vD, vS, vE, vB, vK, vR = 10, 20, 30, 50, 60, 70
    i("s_lshl_b32 s53, s52, 2")
    for k in range(NI):
        if k == NI-1: i("s_mov_b64 exec, s[54:55]")
        i(f"buffer_load_dword v{vD+k}, v1, s[28:31], s53 offen")
        i(f"buffer_load_dword v{vS+k}, v1, s[32:35], s53 offen")
        if k < NI-1: i("s_add_u32 s53, s53, 2048")
    i("s_mov_b64 exec, -1")
    i("s_lshl_b32 s53, s52, 3")
    for k in range(NI):
        if k == NI-1: i("s_mov_b64 exec, s[54:55]")
        i(f"buffer_load_dwordx2 v[{vE+2*k}:{vE+2*k+1}], v2, s[36:39], s53 offen")
        if k < NI-1: i("s_add_u32 s53, s53, 4096")
    i("s_mov_b64 exec, -1")
    c("zero hist")
    i("v_and_b32 v3, 63, v0")
    i("v_lshlrev_b32 v3, 2, v3               ; lane*4")
    i("v_mov_b32 v4, 0")
    i("ds_write_b32 v3, v4")
    i(f"s_mov_b32 s56, {MAGIC196}")
    i("v_mov_b32 v5, 1")
    i("s_waitcnt lgkmcnt(0)")
    i("s_barrier")
    for k in range(NI):
        if k == NI-1: i("s_mov_b64 exec, s[54:55]")
        i(f"s_waitcnt vmcnt({2*(NI-1-k)+NI})")
        i(f"v_mul_hi_u32 v{vB+k}, v{vD+k}, s56")
        i(f"v_mul_u32_u24 v6, {NPB}, v{vB+k}")
        i(f"v_sub_u32 v6, v{vD+k}, v6          ; ldst")
        i(f"v_lshl_or_b32 v{vK+k}, v6, 16, v{vS+k}")
        i(f"v_lshlrev_b32 v{vB+k}, 2, v{vB+k}")
        i(f"ds_add_rtn_u32 v{vR+k}, v{vB+k}, v5")
    i("s_mov_b64 exec, -1")
    i("s_waitcnt lgkmcnt(0)")
    i("s_barrier")
    i("ds_read_b32 v7, v3")
    i("s_waitcnt lgkmcnt(0)")
    i("v_mov_b32 v8, v7")
    wave_scan(8)
    i("v_sub_u32 v8, v8, v7                  ; exclusive")
    for k in range(NI):
        i(f"ds_bpermute_b32 v{vD+k}, v{vB+k}, v8")
    c("wave 0 writes offs")
    i("s_cmp_lg_u32 s3, 0")
    i("s_cbranch_scc1 K1_P_NOOFF")
    i("v_lshlrev_b32 v9, 9, v0               ; lane*512")
    i("s_lshl_b32 s53, s2, 2")
    i("buffer_store_dword v8, v9, s[48:51], s53 offen")
    i(f"v_mov_b32 v4, {CH}")
    i(f"v_mov_b32 v9, {64*512}")
    i("s_mov_b64 exec, 1")
    i("buffer_store_dword v4, v9, s[48:51], s53 offen")
    i("s_mov_b64 exec, -1")
    e("K1_P_NOOFF:")
    i("s_waitcnt lgkmcnt(0) vmcnt(0)")
    i("s_lshl_b32 s53, s52, 2")
    i("s_lshl_b32 s57, s52, 3")
    for k in range(NI):
        if k == NI-1: i("s_mov_b64 exec, s[54:55]")
        i(f"v_add_u32 v{vR+k}, v{vR+k}, v{vD+k}   ; pos")
        i(f"v_lshlrev_b32 v6, 2, v{vR+k}")
        i(f"v_lshlrev_b32 v{vB+k}, 3, v{vR+k}")
        i(f"buffer_store_dword v{vK+k}, v6, s[40:43], s53 offen")
        i(f"buffer_store_dwordx2 v[{vE+2*k}:{vE+2*k+1}], v{vB+k}, s[44:47], s57 offen")
    i("s_endpgm")
    e("K1_GEMM:")
    i(f"s_sub_u32 s52, s2, {P}               ; gw")
    i("s_lshr_b32 s53, s3, 2")
    i("s_and_b32 s54, s3, 3                  ; q")
    srd(28, 4, 0, N*256)
    i("s_cmp_eq_u32 s53, 0")
    c("W0 = p? w_a : w_b ; W1 = p? w_u : w_v")
    i("s_cselect_b32 s32, s14, s12")
    i("s_cselect_b32 s33, s15, s13")
    i("s_mov_b32 s34, 32768")
    i("s_mov_b32 s35, 0x00020000")
    i("s_cselect_b32 s36, s20, s18")
    i("s_cselect_b32 s37, s21, s19")
    i("s_mov_b32 s38, 32768")
    i("s_mov_b32 s39, 0x00020000")
    i(f"s_cselect_b32 s55, {T_OFF}, {AU_OFF}")
    i("s_add_u32 s40, s26, s55")
    i("s_addc_u32 s41, s27, 0")
    i(f"s_mov_b32 s42, {T_SZ}")
    i("s_mov_b32 s43, 0x00020000")
    i("v_and_b32 v1, 63, v0                  ; lane")
    i("v_and_b32 v2, 15, v1                  ; i / j")
    i("v_lshrrev_b32 v3, 4, v1               ; g")
    c("W voffset = g*2048 + q*64 + i*4")
    i("v_lshlrev_b32 v4, 11, v3")
    i("v_lshl_add_u32 v4, v2, 2, v4")
    i("s_lshl_b32 s56, s54, 6")
    i("v_add_u32 v4, s56, v4")
    WF0 = 16
    def WF(mat, ks, blk): return WF0 + ((mat*4 + ks)*2 + blk)*4
    for mat in range(2):
        for ks in range(4):
            i(f"s_mov_b32 s57, {ks*8192}")
            for kk in range(8):
                dst = WF(mat, ks, kk & 1) + (kk >> 1)
                i(f"buffer_load_dword v{dst}, v4, s[{32+4*mat}:{35+4*mat}], s57 offen offset:{kk*256}")
    XF = 80
    AC = 96
    TM = 112
    c("x voffset = j*256 + g*16 ; soffset = nb*4096 ; imm ks*64")
    i("v_lshlrev_b32 v5, 8, v2")
    i("v_lshl_add_u32 v5, v3, 4, v5")
    c("out voffset = j*512 + q*128 + g*32 ; soffset = nb*8192")
    i("v_lshlrev_b32 v6, 9, v2")
    i("v_lshl_add_u32 v6, v3, 5, v6")
    i("s_lshl_b32 s56, s54, 7")
    i("v_add_u32 v6, s56, v6")
    i(f"s_mul_i32 s58, s52, {GB}              ; nb")
    i(f"s_add_u32 s59, s58, {GB}")
    i(f"s_min_u32 s59, s59, {NBLK}")
    i("s_lshl_b32 s60, s58, 12")
    for ks in range(4):
        i(f"buffer_load_dwordx4 v[{XF+4*ks}:{XF+4*ks+3}], v5, s[28:31], s60 offen offset:{ks*64}")
    c("dummy row (gw==0, wave 0)")
    i("s_or_b32 s56, s52, s3")
    i("s_cmp_lg_u32 s56, 0")
    i("s_cbranch_scc1 K1_G_NODUMMY")
    i("v_mov_b32 v8, 0x7f80")
    i("v_mov_b32 v9, 0x7f80")
    i("v_lshlrev_b32 v7, 3, v1")
    i(f"s_mov_b32 s56, {DUMMY_ROW*512}")
    i("buffer_store_dwordx2 v[8:9], v7, s[40:43], s56 offen")
    e("K1_G_NODUMMY:")
    i("s_mov_b32 s61, 0x05040100")
    i("s_mov_b32 s62, 0x07060302")
    i(f"s_mov_b32 s63, 0x{NLOG2E:08x}")
    i("s_mov_b32 s64, 0x7fffffff")
    i("s_mov_b32 s65, 0xffff0000")
    i("s_mov_b32 s66, 0x80000000")
    i("s_mov_b32 s67, 0x8000")
    i("s_waitcnt vmcnt(4)")
    for mat in range(2):
        for ks in range(4):
            for cc in range(4):
                X = WF(mat, ks, 0) + cc; Y = WF(mat, ks, 1) + cc
                i(f"v_perm_b32 v7, v{Y}, v{X}, s61")
                i(f"v_perm_b32 v{Y}, v{Y}, v{X}, s62")
                i(f"v_mov_b32 v{X}, v7")
    e("K1_G_LOOP:")
    i("s_waitcnt vmcnt(0)")
    for ks in range(4):
        for mat in range(2):
            for blk in range(2):
                a = AC + (mat*2+blk)*4
                w = WF(mat, ks, blk)
                cin = "0" if ks == 0 else f"v[{a}:{a+3}]"
                i(f"v_mfma_f32_16x16x32_bf16 v[{a}:{a+3}], v[{w}:{w+3}], v[{XF+4*ks}:{XF+4*ks+3}], {cin}")
    i("s_lshl_b32 s68, s58, 13")
    i("s_add_u32 s58, s58, 1")
    i("s_lshl_b32 s60, s58, 12")
    c("prefetch next x block (OOB rows read 0)")
    for ks in range(4):
        i(f"buffer_load_dwordx4 v[{XF+4*ks}:{XF+4*ks+3}], v5, s[28:31], s60 offen offset:{ks*64}")
    i("s_nop 4")
    i("s_cmp_lg_u32 s53, 0")
    i("s_cbranch_scc1 K1_G_EPI_AU")
    for r in range(4):
        b0 = AC + 0*4 + r; b1 = AC + 1*4 + r
        h0 = AC + 2*4 + r; h1 = AC + 3*4 + r
        t0 = TM + 8; t1 = TM + 9; t2 = TM+10
        i(f"v_mul_f32 v{b0}, s63, v{b0}")
        i(f"v_mul_f32 v{b1}, s63, v{b1}")
        i(f"v_cvt_pk_bf16_f32 v{t0}, v{b0}, v{b1}")
        for b, h in ((0, h0), (1, h1)):
            o = TM + 2*r + b
            if b == 0: i(f"v_and_b32 v{t1}, 0xffff, v{t0}")
            else:      i(f"v_lshrrev_b32 v{t1}, 16, v{t0}")
            i(f"v_and_b32 v{t2}, s64, v{h}")
            i(f"v_sub_u32 v{t2}, v{t2}, v{t1}")
            i(f"v_add_u32 v{t2}, s67, v{t2}")
            i(f"v_max_i32 v{t2}, 0, v{t2}")
            i(f"v_and_or_b32 v{t2}, v{t2}, s65, v{t1}")
            i(f"v_and_or_b32 v{o}, v{h}, s66, v{t2}")
    i("s_branch K1_G_STORE")
    e("K1_G_EPI_AU:")
    for r in range(4):
        for b in range(2):
            a = AC + b*4 + r; u = AC + (2+b)*4 + r
            i(f"v_mul_f32 v{a}, s63, v{a}")
            i(f"v_cvt_pk_bf16_f32 v{TM+2*r+b}, v{a}, v{u}")
    e("K1_G_STORE:")
    i(f"buffer_store_dwordx4 v[{TM}:{TM+3}], v6, s[40:43], s68 offen")
    i(f"buffer_store_dwordx4 v[{TM+4}:{TM+7}], v6, s[40:43], s68 offen offset:16")
    i("s_cmp_lt_u32 s58, s59")
    i("s_cbranch_scc1 K1_G_LOOP")
    e("K1_END:")
    i("s_endpgm")

def main():
    hdr = open("gather_scatter__edge_featured_mpnn_gatedgcn__graph.s.ref").read().splitlines()
    for ln in hdr:
        if ln.startswith(";") and "@launch" not in ln and "Override" not in ln and "grid=ceil" not in ln:
            e(ln)
    e(f"; @launch kernel=k1_prep_kernel grid=({P+GW},1,1) block=(512,1,1) lds=256")
    if WITH_K2:
        import gen_k2
        e(f"; @launch kernel=k2_main_kernel grid=(256,1,1) block=(1024,1,1) lds={gen_k2.LDS_TOTAL}")
    e('.amdgcn_target "amdgcn-amd-amdhsa--gfx950"')
    e(".text")
    gen_k1()
    if WITH_K2:
        gen_k2.gen_k2(sys.modules[__name__])
    e('.section .rodata,"a"')
    e(".p2align 6")
    kernel_desc("k1_prep_kernel", 128, 80)
    if WITH_K2:
        e(".p2align 6")
        kernel_desc("k2_main_kernel", gen_k2.VGPRS, 102)
    out = sys.argv[1] if len(sys.argv) > 1 else "gather_scatter__edge_featured_mpnn_gatedgcn__graph.s"
    open(out, "w").write("\n".join(L) + "\n")

WITH_K2 = (len(sys.argv) <= 2)
if __name__ == "__main__":
    main()
```

```python
import os
CAP = 7680
CNT_R, NBASE_R, ORDER_R, QS_R, H2_R, GST_R, MISC_R, WCF_R = 0, 1024, 2048, 3072, 4096, 4352, 4608, 4672
SRC_O = 5888
EAT_O = SRC_O + CAP * 4
DEN_O = EAT_O + CAP * 8
NN = 200
NUM_D = NN * 128
APR_O = DEN_O + 2 * NUM_D
SYNC_O = APR_O + NN * 64
LDS_TOTAL = SYNC_O + 16
HIST = 38016
WST = 38400
XST = WST + 32768
XP_O = XST + 208 * 256
VGPRS = 128
NG = 25
RSMALL = 4
SPIN_MAX = 1 << 18
MAP = int(os.environ.get("MAP", "1"))
X_NOG = int(os.environ.get("NOG", "0")); X_NOT = int(os.environ.get("NOT", "0")); X_NOM = int(os.environ.get("NOM", "0"))
PK1 = int(os.environ.get("PK1", "1")); PKD = int(os.environ.get("PKD", "1")); PKN = int(os.environ.get("PKN", "1"))
GSC = os.environ.get("GSC", " sc1")

def gen(G):
    e, c, i, srd = G.e, G.c, G.i, G.srd
    N, E, NPB, CH, TQ = G.N, G.E, G.NPB, G.CH, G.TQ
    IMG = G.KP_IMG; KEYO = G.KEYO; PAYO = G.PAYO
    def unmask(): i("s_mov_b64 exec, -1")
    G.kernel_header(G.KNAME)
    i("s_cmp_ge_u32 s2, 256")
    i("s_cbranch_scc1 KF_END")
    G.stamp_early(100)
    G.load_kernargs()
    i("v_lshrrev_b32 v1, 6, v0")
    i("v_lshlrev_b32 v4, 4, v0               ; tid*16")
    i("v_readfirstlane_b32 s3, v1")
    if MAP == 1:
        c("q = 2*(id&1) + ((id>>3)&1) ; bucket = ((id>>1)&3)*16 + (id>>4)")
        i("s_and_b32 s28, s2, 1")
        i("s_lshl_b32 s28, s28, 1")
        i("s_bfe_u32 s30, s2, 0x10003")
        i("s_add_u32 s28, s28, s30")
        i("s_bfe_u32 s29, s2, 0x20001")
        i("s_lshl_b32 s29, s29, 4")
        i("s_lshr_b32 s30, s2, 4")
        i("s_add_u32 s29, s29, s30")
    else:
        c("q = id&3 ; bucket = (id>>3)*2 + ((id>>2)&1)")
        i("s_and_b32 s28, s2, 3")
        i("s_lshr_b32 s29, s2, 3")
        i("s_lshl_b32 s29, s29, 1")
        i("s_bfe_u32 s30, s2, 0x10002")
        i("s_add_u32 s29, s29, s30")
    i(f"s_mul_i32 s30, s29, {NPB}")
    i(f"s_sub_u32 s31, {N}, s30")
    i(f"s_min_u32 s31, s31, {NPB}             ; nvalid")
    c("chunk c = (id&7) | ((id>>4)<<3) ; P-WG iff (id&8)==0")
    i("s_lshr_b32 s84, s2, 4")
    i("s_lshl_b32 s84, s84, 3")
    i("s_and_b32 s85, s2, 7")
    i("s_or_b32 s84, s84, s85                ; chunk")
    i(f"v_cmp_gt_u32 vcc, {CH//4+1}, v0")
    i("s_mov_b64 s[86:87], vcc               ; M0")
    i(f"v_cmp_gt_u32 vcc, {CH//4}, v0")
    i("s_mov_b64 s[88:89], vcc               ; M1")
    i("v_lshlrev_b32 v47, 5, v0              ; tid*32")
    i(f"s_mul_i32 s97, s84, {CH*4}")
    i(f"s_mul_i32 s98, s84, {CH*8}")
    i("s_and_b32 s95, s3, 1                  ; p (type)")
    i("s_lshr_b32 s96, s3, 1                 ; rb0")
    i("s_lshl_b32 s99, s28, 6                ; q*64")
    i("v_and_b32 v1, 63, v0                  ; lane")
    i("v_lshlrev_b32 v40, 2, v1              ; lane*4")
    i("v_mov_b32 v41, 0")
    i(f"v_mov_b32 v42, {SYNC_O}")
    i(f"ds_write_b32 v40, v41 offset:{HIST}")
    i("ds_write_b32 v42, v41")
    i("ds_write_b32 v42, v41 offset:4")
    i("ds_write_b32 v42, v41 offset:8")
    i("v_mov_b32 v41, 1")
    i("s_waitcnt lgkmcnt(0)")
    srd(64, 10, 0, E*4)
    srd(68, 8, 0, E*4)
    srd(72, 6, 0, E*8)
    vD, vS, vE, vB, vK, vR, vO = 80, 84, 88, 96, 100, 104, 108
    i("s_bitcmp1_b32 s2, 3")
    i("s_cbranch_scc1 KF_NOPLD")
    i("s_mov_b64 exec, s[86:87]")
    i(f"buffer_load_dwordx4 v[{vD}:{vD+3}], v4, s[64:67], s97 offen")
    i(f"buffer_load_dwordx4 v[{vS}:{vS+3}], v4, s[68:71], s97 offen")
    i(f"buffer_load_dwordx4 v[{vE}:{vE+3}], v47, s[72:75], s98 offen")
    i(f"buffer_load_dwordx4 v[{vE+4}:{vE+7}], v47, s[72:75], s98 offen offset:16")
    unmask()
    i("s_barrier")
    e("KF_NOPLD:")
    c("W SRDs: waves 0-7: w_b, w_a ; waves 8-15: w_v, w_u")
    i("s_cmp_lt_u32 s3, 8")
    i("s_cselect_b32 s76, s14, s20")
    i("s_cselect_b32 s77, s15, s21")
    i("s_mov_b32 s78, 32768")
    i("s_mov_b32 s79, 0x00020000")
    i("s_cselect_b32 s80, s12, s18")
    i("s_cselect_b32 s81, s13, s19")
    i("s_mov_b32 s82, 32768")
    i("s_mov_b32 s83, 0x00020000")
    srd(48, 4, 0, N * 256)
    i("v_bfe_u32 v7, v0, 2, 7                ; k")
    i("v_and_b32 v8, 3, v0")
    i("v_lshlrev_b32 v8, 4, v8")
    i("v_lshl_add_u32 v7, v7, 8, v8          ; k*256 + c4*16")
    WF0 = 16
    i("s_lshl_b32 s97, s30, 8")
    i("s_add_u32 s98, s97, 49152")
    i("v_cmp_gt_u32 vcc, 256, v0")
    i("s_mov_b64 exec, vcc")
    i(f"buffer_load_dwordx4 v[{WF0+20}:{WF0+23}], v4, s[48:51], s98 offen")
    unmask()
    i(f"buffer_load_dwordx4 v[{WF0}:{WF0+3}], v7, s[76:79], s99 offen")
    i(f"buffer_load_dwordx4 v[{WF0+4}:{WF0+7}], v7, s[80:83], s99 offen")
    for it in range(3):
        i(f"buffer_load_dwordx4 v[{WF0+8+4*it}:{WF0+11+4*it}], v4, s[48:51], s97 offen")
        if it < 2: i("s_add_u32 s97, s97, 16384")
    c("persistent SRDs")
    i(f"s_mul_i32 s97, s28, {TQ}")
    i("s_add_u32 s32, s26, s97")
    i("s_addc_u32 s33, s27, 0")
    i(f"s_mov_b32 s34, {TQ}")
    i("s_mov_b32 s35, 0x00020000")
    i(f"s_mul_i32 s97, s2, {G.UWG}")
    i(f"s_add_u32 s97, s97, {G.U_OFF}")
    i("s_add_u32 s36, s26, s97")
    i("s_addc_u32 s37, s27, 0")
    i(f"s_mov_b32 s38, {G.UWG}")
    i("s_mov_b32 s39, 0x00020000")
    srd(40, 26, G.KP_OFF, G.KP_SZ)
    srd(52, 22, 0, N * 256)
    srd(56, 16, 0, 1024)
    srd(60, 24, 0, 256)
    i("s_mov_b32 s44, 0x22221111")
    i("s_mov_b32 s45, 0x88884444")
    G.stamp_fix(100)
    i("v_and_b32 v2, 15, v1                  ; i / j")
    i("v_lshrrev_b32 v3, 4, v1               ; g")
    i("v_lshlrev_b32 v6, 4, v1               ; lane*16")
    c("epilogue addresses -> v44,v45,v46")
    i("s_cmp_eq_u32 s95, 0")
    i("s_cbranch_scc0 KF_G_ADDR_AU")
    i("s_lshl_b32 s97, s96, 11")
    i(f"s_add_u32 s97, s97, {XP_O}")
    c("T: write addr = j*128 + (((4b+g) ^ (j&7))*16) ; read addr = row*128 + ((c ^ (row&7))*16), row = l>>3 (+8)")
    i("v_and_b32 v14, 7, v2")
    i("v_xor_b32 v14, v14, v3")
    i("v_lshlrev_b32 v15, 7, v2")
    i("v_add_u32 v15, s97, v15")
    i("v_lshl_add_u32 v44, v14, 4, v15")
    i("v_xor_b32 v14, 4, v14")
    i("v_lshl_add_u32 v45, v14, 4, v15")
    i("v_lshrrev_b32 v14, 3, v1              ; row")
    i("v_xor_b32 v15, v14, v1")
    i("v_and_b32 v15, 7, v15")
    i("v_lshlrev_b32 v15, 4, v15")
    i("v_lshl_add_u32 v15, v14, 7, v15")
    i("v_add_u32 v46, s97, v15")
    i("s_branch KF_G_ADDR_DONE")
    e("KF_G_ADDR_AU:")
    c("AU: v45 = j*64 + g*8 (U voffset) ; v44 = APR_O + rb0*1024 + v45")
    i("v_lshlrev_b32 v45, 6, v2")
    i("v_lshl_add_u32 v45, v3, 3, v45")
    i("s_lshl_b32 s97, s96, 10")
    i(f"s_add_u32 s97, s97, {APR_O}")
    i("v_add_u32 v44, s97, v45")
    i("v_mov_b32 v46, v2")
    e("KF_G_ADDR_DONE:")
    c("W staging addr: WST + ((t*16) ^ (t&32))")
    i("v_and_b32 v8, 32, v0")
    i("v_xor_b32 v8, v8, v4")
    i(f"v_add_u32 v8, {WST}, v8")
    c("x staging addr: XST + row*256 + ((c ^ (row&15))*16), row = t>>4, c = t&15")
    i("v_lshrrev_b32 v7, 4, v0")
    i("v_xor_b32 v5, v2, v7")
    i("v_and_b32 v5, 15, v5")
    i("v_lshlrev_b32 v5, 4, v5")
    i("v_lshl_add_u32 v5, v7, 8, v5")
    i(f"v_add_u32 v5, {XST}, v5")
    c("tr-read addr (blk): WST + p*16384 + (8g + r)*64 + ((32blk) ^ (32(g&1))) + 8*c4")
    i("v_lshrrev_b32 v9, 2, v2               ; r")
    i("v_lshl_add_u32 v9, v3, 3, v9          ; 8g + r")
    i("v_and_b32 v10, 3, v2                  ; c4")
    i("v_lshlrev_b32 v10, 3, v10")
    i("v_lshl_add_u32 v10, v9, 6, v10")
    i("s_lshl_b32 s97, s95, 14")
    i(f"s_add_u32 s97, s97, {WST}")
    i("v_add_u32 v10, s97, v10")
    i("v_and_b32 v11, 1, v3")
    i("v_lshlrev_b32 v11, 5, v11")
    i("v_xor_b32 v12, 32, v11")
    i("v_add_u32 v11, v10, v11               ; blk 0")
    i("v_add_u32 v12, v10, v12               ; blk 1")
    c("x frag addrs")
    i("s_lshl_b32 s97, s96, 12")
    i(f"s_add_u32 s97, s97, {XST}")
    i("v_lshl_add_u32 v13, v2, 8, s97        ; j*256 + base")
    XA = (7, 9, 10, 13)
    for ks in range(4):
        i(f"v_add_u32 v14, {4*ks}, v3")
        i("v_xor_b32 v14, v14, v2")
        i(f"v_lshl_add_u32 v{XA[ks]}, v14, 4, v13")
    i(f"s_mov_b32 s90, 0x{G.NLOG2E:08x}")
    i("s_mov_b32 s91, 0x7fffffff")
    i("s_mov_b32 s92, 0xffff0000")
    i("s_mov_b32 s93, 0x80000000")
    i("s_mov_b32 s94, 0x8000")
    i("s_bitcmp1_b32 s2, 3")
    i("s_cbranch_scc1 KF_G_STAGE")
    def gstage(waits):
        for it in range(6):
            if waits and it < 5: i(f"s_waitcnt vmcnt({4-it})")
            if it < 2: i(f"ds_write_b128 v8, v[{WF0+4*it}:{WF0+4*it+3}] offset:{it*16384}")
            else:
                if it == 5:
                    i("v_cmp_gt_u32 vcc, 256, v0")
                    i("s_mov_b64 exec, vcc")
                i(f"ds_write_b128 v5, v[{WF0+4*it}:{WF0+4*it+3}] offset:{(it-2)*16384}")
        unmask()
    i(f"s_mov_b32 s85, {G.MAGIC196}")
    G.stamp(1)
    i("s_waitcnt vmcnt(7)")
    for k in range(4):
        i(f"v_mul_hi_u32 v{vB+k}, v{vD+k}, s85")
        i(f"v_mul_u32_u24 v42, {NPB}, v{vB+k}")
        i(f"v_sub_u32 v42, v{vD+k}, v42          ; ldst")
        i(f"v_lshl_or_b32 v{vK+k}, v42, 16, v{vS+k}")
        i(f"v_lshlrev_b32 v{vB+k}, 2, v{vB+k}")
    for k in range(4):
        if k < 2: i(f"s_mov_b64 exec, s[{86+2*k}:{87+2*k}]")
        i(f"ds_add_rtn_u32 v{vR+k}, v{vB+k}, v41 offset:{HIST}")
    unmask()
    i("s_waitcnt lgkmcnt(0)")
    i("s_barrier")
    G.stamp(2)
    i(f"ds_read_b32 v42, v40 offset:{HIST}")
    i("s_waitcnt lgkmcnt(0)")
    i("v_mov_b32 v43, v42")
    G.wave_scan(43)
    i("v_sub_u32 v43, v43, v42               ; exclusive")
    for k in range(4):
        i(f"v_and_b32 v{vB+k}, 0xfc, v{vB+k}")
        i(f"ds_bpermute_b32 v{vD+k}, v{vB+k}, v43")
    i("s_cmp_lg_u32 s3, 15")
    i("s_cbranch_scc1 KF_P_NOOFF")
    i("ds_write_b32 v40, v43")
    i(f"v_mov_b32 v42, {CH}")
    i("s_mov_b64 exec, 1")
    i("ds_write_b32 v40, v42 offset:256")
    unmask()
    e("KF_P_NOOFF:")
    i("s_waitcnt lgkmcnt(0) vmcnt(5)")
    for k in range(4):
        i(f"v_add_u32 v{vR+k}, v{vR+k}, v{vD+k}   ; pos")
        i(f"v_lshlrev_b32 v{vD+k}, 2, v{vR+k}")
        i(f"v_lshlrev_b32 v{vB+k}, 3, v{vR+k}")
    for k in range(4):
        if k < 2: i(f"s_mov_b64 exec, s[{86+2*k}:{87+2*k}]")
        i(f"ds_write_b32 v{vD+k}, v{vK+k} offset:{KEYO}")
        i(f"ds_write_b64 v{vB+k}, v[{vE+2*k}:{vE+2*k+1}] offset:{PAYO}")
    unmask()
    i(f"s_mul_i32 s97, s84, {IMG}")
    NPC = IMG // 16
    i(f"v_cmp_gt_u32 vcc, {NPC-2*1024}, v0")
    i("s_waitcnt lgkmcnt(0)")
    i("s_barrier")
    G.stamp(3)
    c("copy out the chunk image (write-through)")
    for it in range(3):
        i(f"ds_read_b128 v[{vO+4*it}:{vO+3+4*it}], v4 offset:{it*16384}")
    c("G loads have landed by now: wait first so the staging below needs no vmcnt")
    i("s_waitcnt vmcnt(0)")
    for it in range(3):
        i(f"s_waitcnt lgkmcnt({2-it})")
        if it == 2: i("s_mov_b64 exec, vcc")
        i(f"buffer_store_dwordx4 v[{vO+4*it}:{vO+3+4*it}], v4, s[40:43], s97 offen sc1")
        if it < 2: i("s_add_u32 s97, s97, 16384")
    unmask()
    gstage(False)
    c("P signal: last wave whose image stores have drained arrives on the P counter; last arriver releases")
    i(f"v_mov_b32 v14, {SYNC_O}")
    i("s_mov_b64 exec, 1")
    i("s_waitcnt vmcnt(0)")
    i("ds_add_rtn_u32 v14, v14, v41")
    i("s_waitcnt lgkmcnt(0)")
    i("v_readfirstlane_b32 s97, v14")
    i("v_mov_b32 v14, 0")
    i("v_mov_b32 v15, 1")
    i("s_cmp_lg_u32 s97, 15")
    i("s_cbranch_scc1 KF_P_NOSIG")
    i("buffer_atomic_add v15, v14, s[60:63], 0 offen sc0")
    i("s_waitcnt vmcnt(0)")
    i("v_readfirstlane_b32 s97, v15")
    i("s_cmp_lg_u32 s97, 127")
    i("s_cbranch_scc1 KF_P_NOSIG")
    i("buffer_store_dword v41, v14, s[60:63], 0 offen offset:128 sc1")
    e("KF_P_NOSIG:")
    unmask()
    G.stamp(4)
    i("s_branch KF_G_STAGED")
    e("KF_G_STAGE:")
    gstage(True)
    e("KF_G_STAGED:")
    for it in range(0):
        pass
    i("v_mov_b32 v1, v44")
    i("v_mov_b32 v2, v45")
    i("v_mov_b32 v3, v46")
    i("s_waitcnt lgkmcnt(0)")
    i("s_barrier")
    XF = (80, 96); AC = 112
    def WF(mat, ks, blk): return WF0 + ((mat*4 + ks)*2 + blk)*4
    def xread(bb):
        X = XF[bb & 1]
        for ks in range(4):
            i(f"ds_read_b128 v[{X+4*ks}:{X+4*ks+3}], v{XA[ks]} offset:{bb*32768}")
    xread(0)
    for ks in range(4):
        for mat in range(2):
            for blk in range(2):
                for h in range(2):
                    w = WF(mat, ks, blk) + 2*h
                    i(f"ds_read_b64_tr_b16 v[{w}:{w+1}], v{11+blk} offset:{mat*8192 + ks*2048 + h*256}")
    xread(1)
    i("s_lshl_b32 s98, s30, 7")
    i("s_lshl_b32 s97, s96, 11")
    i("s_add_u32 s98, s98, s97")
    i("s_lshl_b32 s99, s96, 10")
    for bb in range(2):
        X = XF[bb & 1]
        if bb == 1:
            i("s_cmp_ge_u32 s96, 5")
            i("s_cbranch_scc1 KF_G_DONE")
            i("s_waitcnt lgkmcnt(0)")
        for ks in range(4):
            if bb == 0 and ks != 1: i(f"s_waitcnt lgkmcnt({min(15,(3-ks)*8+4)})")
            for mat in range(2):
                for blk in range(2):
                    a = AC + (mat*2+blk)*4
                    w = WF(mat, ks, blk)
                    cin = "0" if ks == 0 else f"v[{a}:{a+3}]"
                    i(f"v_mfma_f32_16x16x32_bf16 v[{a}:{a+3}], v[{w}:{w+3}], v[{X+4*ks}:{X+4*ks+3}], {cin}")
        i("s_nop 7")
        i("s_cmp_lg_u32 s95, 0")
        i(f"s_cbranch_scc1 KF_G_EPI_AU{bb}")
        for b in range(2):
            for r in range(0, 4, 2):
                b0 = AC + b*4 + r; b1 = b0 + 1
                i(f"v_mul_f32 v{b0}, s90, v{b0}")
                i(f"v_mul_f32 v{b1}, s90, v{b1}")
                i(f"v_cvt_pk_bf16_f32 v4, v{b0}, v{b1}")
                for rr in range(2):
                    h = AC + (2+b)*4 + r + rr
                    if rr == 0: i("v_and_b32 v14, 0xffff, v4")
                    else:       i("v_lshrrev_b32 v14, 16, v4")
                    i(f"v_and_b32 v15, s91, v{h}")
                    i("v_sub_u32 v15, v15, v14")
                    i("v_add_u32 v15, s94, v15")
                    i("v_max_i32 v15, 0, v15")
                    i("v_and_or_b32 v15, v15, s92, v14")
                    i(f"v_and_or_b32 v{h}, v{h}, s93, v15")
            i(f"ds_write_b128 v{1+b}, v[{AC+8+4*b}:{AC+11+4*b}]")
        i(f"ds_read_b128 v[{AC}:{AC+3}], v3")
        i(f"ds_read_b128 v[{AC+4}:{AC+7}], v3 offset:1024")
        if bb == 1:
            c("block 12: only rows 0-3 exist")
            i("s_cmp_eq_u32 s96, 4")
            i("s_cselect_b32 s101, 0, -1")
            i("s_mov_b32 s100, -1")
            i("s_mov_b64 exec, s[100:101]")
        i("s_waitcnt lgkmcnt(0)")
        i(f"buffer_store_dwordx4 v[{AC}:{AC+3}], v6, s[32:35], s98 offen sc1")
        if bb == 1:
            unmask()
            i("s_cbranch_scc1 KF_G_DONE")
        i(f"buffer_store_dwordx4 v[{AC+4}:{AC+7}], v6, s[32:35], s98 offen offset:1024 sc1")
        i(f"s_branch KF_G_NEXT{bb}")
        e(f"KF_G_EPI_AU{bb}:")
        if bb == 1:
            c("block 12: A' rows < 200 only (j < 8)")
            i("s_cmp_eq_u32 s96, 4")
            i("s_cselect_b32 s97, 8, 16")
            i("v_cmp_gt_u32 vcc, s97, v3")
        for b in range(2):
            a = AC + b*4; u = AC + (2+b)*4
            for r in range(4):
                i(f"v_mul_f32 v{a+r}, s90, v{a+r}")
            i(f"v_cvt_pk_bf16_f32 v{a}, v{a}, v{a+1}")
            i(f"v_cvt_pk_bf16_f32 v{a+1}, v{a+2}, v{a+3}")
            i(f"v_cvt_pk_bf16_f32 v{u}, v{u}, v{u+1}")
            i(f"v_cvt_pk_bf16_f32 v{u+1}, v{u+2}, v{u+3}")
            i(f"buffer_store_dwordx2 v[{u}:{u+1}], v2, s[36:39], s99 offen offset:{b*32}")
            if bb == 1: i("s_mov_b64 exec, vcc")
            i(f"ds_write_b64 v1, v[{a}:{a+1}] offset:{bb*8192 + b*32}")
            if bb == 1: unmask()
        e(f"KF_G_NEXT{bb}:")
        if bb == 0:
            i("s_add_u32 s98, s98, 16384")
            i("s_add_u32 s99, s99, 8192")
            i("s_nop 1")
    e("KF_G_DONE:")
    c("dummy row (bucket 63, wave 0)")
    i("s_cmp_lg_u32 s29, 63")
    i("s_cbranch_scc1 KF_NODUMMY")
    i("s_cmp_lg_u32 s3, 0")
    i("s_cbranch_scc1 KF_NODUMMY")
    for r in range(4): i(f"v_mov_b32 v{100+r}, {G.DUMMY_VAL}")
    i(f"s_mov_b32 s97, {G.DUMMY_ROW*128}")
    i("s_mov_b64 exec, 0xff")
    i("buffer_store_dwordx4 v[100:103], v6, s[32:35], s97 offen sc1")
    unmask()
    e("KF_NODUMMY:")
    KEY, PAY, RNK, NBV = 20, 36, 68, 84
    MSK = 64
    i(f"s_mul_i32 s88, s3, {8*IMG}")
    i("s_lshl_b32 s89, s29, 2")
    i("s_add_u32 s88, s88, s89")
    i("v_and_b32 v1, 63, v0                  ; lane")
    i("v_and_b32 v9, 7, v1                   ; jj")
    i("v_lshrrev_b32 v8, 3, v1               ; gamma")
    i("v_lshlrev_b32 v2, 4, v9               ; jj*16")
    i("v_lshlrev_b32 v3, 2, v1               ; lane*4")
    i("v_mov_b32 v126, 1")
    i("s_mov_b32 s90, 1")
    i("s_mov_b32 s80, 0                      ; lo")
    i("s_mov_b32 s81, 128                    ; R")
    i("s_waitcnt lgkmcnt(0)")
    i("s_barrier")
    G.stamp(5)
    e("K2_ROUND:")
    i("v_lshlrev_b32 v10, 4, v0              ; tid*16")
    for r in range(4): i(f"v_mov_b32 v{100+r}, 0")
    i("s_cmp_lg_u32 s3, 1")
    i("s_cbranch_scc1 K2_Z_SKIP")
    i("v_lshlrev_b32 v11, 4, v1")
    i(f"ds_write_b128 v11, v[100:103] offset:{CNT_R}")
    i("v_cmp_gt_u32 vcc, 16, v1")
    i("s_mov_b64 exec, vcc")
    i(f"ds_write_b128 v11, v[100:103] offset:{H2_R}")
    unmask()
    e("K2_Z_SKIP:")
    i("s_cmp_eq_u32 s90, 0")
    i("s_cbranch_scc1 K2_Z2_SKIP")
    c("first round: zero EAT, ACC, MISC")
    i(f"v_add_u32 v11, {EAT_O}, v10")
    nz = (CAP*8 + 2*NUM_D) // 16
    for it in range(7):
        if it == 4: i("v_add_u32 v11, 65536, v11")
        if it == 6:
            i(f"v_cmp_gt_u32 vcc, {nz - 6*1024}, v0")
            i("s_mov_b64 exec, vcc")
        i(f"ds_write_b128 v11, v[100:103] offset:{(it&3)*16384}")
    unmask()
    i(f"ds_write_b32 v100, v100 offset:{MISC_R}")
    e("K2_Z2_SKIP:")
    for r in range(4): i(f"v_mov_b32 v{100+r}, {G.DUMMY_ROW*128}")
    i(f"ds_write_b128 v10, v[100:103] offset:{SRC_O}")
    i(f"v_cmp_gt_u32 vcc, {CAP//4 - 1024}, v0")
    i("s_mov_b64 exec, vcc")
    i(f"ds_write_b128 v10, v[100:103] offset:{SRC_O+16384}")
    unmask()
    i("s_cmp_eq_u32 s90, 0")
    i("s_cbranch_scc1 K2_NOSYNC")
    c("G signal: last wave whose T stores have drained adds to the quarter counter")
    i(f"v_mov_b32 v10, {SYNC_O}")
    i("s_mov_b64 exec, 1")
    i("s_waitcnt vmcnt(0)")
    i("ds_add_rtn_u32 v10, v10, v126 offset:4")
    i("s_lshl_b32 s97, s28, 4")
    i("s_waitcnt lgkmcnt(0)")
    i("v_readfirstlane_b32 s98, v10")
    i("v_mov_b32 v10, 0")
    i("v_mov_b32 v11, 1")
    i("s_cmp_lg_u32 s98, 15")
    i("s_cbranch_scc1 K2_G_NOSIG")
    i("buffer_atomic_add v11, v10, s[60:63], s97 offen offset:64 sc0")
    i("s_waitcnt vmcnt(0)")
    i("v_readfirstlane_b32 s98, v11")
    i("s_cmp_lg_u32 s98, 63")
    i("s_cbranch_scc1 K2_G_NOSIG")
    i("buffer_store_dword v126, v10, s[60:63], s97 offen offset:192 sc1")
    e("K2_G_NOSIG:")
    unmask()
    G.stamp(6)
    c("wave 0 polls the 128 partition flags")
    i("s_cmp_lg_u32 s3, 0")
    i("s_cbranch_scc1 K2_POLL_DONE")
    i("s_mov_b32 s99, 0")
    i("s_mov_b64 exec, 1")
    e("K2_POLL:")
    i("buffer_load_dword v10, v3, s[60:63], 0 offen offset:128 sc1")
    i("s_add_u32 s99, s99, 1")
    i("s_waitcnt vmcnt(0)")
    i("v_cmp_eq_u32 vcc, 0, v10")
    i("s_cbranch_vccz K2_POLL_OK")
    i("s_sleep 2")
    i(f"s_cmp_lt_u32 s99, {SPIN_MAX}")
    i("s_cbranch_scc1 K2_POLL")
    c("timed out (workgroups not co-resident): flag abort")
    i(f"v_mov_b32 v10, {SYNC_O}")
    i("ds_write_b32 v10, v126 offset:8")
    e("K2_POLL_OK:")
    unmask()
    e("K2_POLL_DONE:")
    i("s_waitcnt lgkmcnt(0)")
    i("s_barrier")
    G.stamp(7)
    e("K2_NOSYNC:")
    c("descriptor load: lanes 0-7 start, 8-15 end")
    i(f"v_mul_u32_u24 v11, {IMG}, v9")
    i("v_lshl_add_u32 v11, v8, 2, v11        ; (l&7)*IMG + (l>>3)*4")
    i("buffer_load_dword v124, v11, s[40:43], s88 offen sc1")
    i(f"v_mov_b32 v123, {SYNC_O}")
    i("ds_read_b32 v123, v123 offset:8")
    c("per-lane descriptors: sg = l>>4, m = l&15 ; v116/117 start(A,B) v118/119 end(A,B)")
    i("v_lshrrev_b32 v10, 4, v1              ; sg")
    i("v_lshlrev_b32 v11, 2, v10")
    i("v_add_u32 v120, 16, v11")
    i("v_add_u32 v121, 32, v11")
    i("v_add_u32 v122, 48, v11")
    i("s_waitcnt vmcnt(0)")
    i("ds_bpermute_b32 v116, v11, v124")
    i("ds_bpermute_b32 v117, v120, v124")
    i("ds_bpermute_b32 v118, v121, v124")
    i("ds_bpermute_b32 v119, v122, v124")
    i("v_and_b32 v11, 15, v1")
    i("v_lshlrev_b32 v11, 2, v11             ; 4m")
    i("s_lshl_b32 s97, s3, 3")
    i("v_add_u32 v10, s97, v10")
    i(f"v_mul_u32_u24 v120, {IMG}, v10        ; segbase A")
    i(f"v_add_u32 v121, {4*IMG}, v120         ; segbase B")
    i("s_add_u32 s97, s80, s81")
    i("s_waitcnt lgkmcnt(0)")
    i("v_readfirstlane_b32 s98, v123")
    G.stamp(8)
    i("s_cmp_lg_u32 s98, 0")
    i("s_cbranch_scc1 KF_END")
    for g in range(2):
        i(f"v_sub_u32 v{118+g}, v{118+g}, v{116+g}   ; len")
    i("v_max_u32 v123, v118, v119")
    for g in range(2):
        i(f"v_add_u32 v{116+g}, v{116+g}, v11        ; off + 4m")
        i(f"v_min_u32 v{118+g}, s97, v{118+g}")
        i(f"v_subrev_u32 v{118+g}, s80, v{118+g}     ; rem")
        i(f"v_sub_u32 v{118+g}, v{118+g}, v11")
        i(f"v_lshl_add_u32 v122, v{116+g}, 2, v{120+g}")
        i(f"v_lshl_add_u32 v{116+g}, v{116+g}, 3, v{120+g}")
        i(f"v_mov_b32 v{120+g}, v122")
    i("s_lshl_b32 s98, s80, 2")
    i(f"s_add_u32 s98, s98, {KEYO}")
    i("s_lshl_b32 s99, s80, 3")
    i(f"s_add_u32 s99, s99, {PAYO}")
    for g in range(2):
        i(f"buffer_load_dwordx4 v[{KEY+4*g}:{KEY+3+4*g}], v{120+g}, s[40:43], s98 offen sc1")
    c("second halves needed?")
    i("v_max_i32 v122, v118, v119")
    i("v_cmp_lt_i32 vcc, 64, v122")
    i("s_cmp_lg_u64 vcc, 0")
    i("s_cselect_b32 s96, 1, 0")
    i("s_cbranch_scc0 K2_SK_LD")
    for g in range(2):
        i(f"buffer_load_dwordx4 v[{KEY+8+4*g}:{KEY+11+4*g}], v{120+g}, s[40:43], s98 offen offset:256 sc1")
    e("K2_SK_LD:")
    for g in range(2):
        for cc in range(4):
            n = 4*g + cc
            i(f"v_cmp_lt_i32 s[{MSK+2*n}:{MSK+2*n+1}], {cc}, v{118+g}")
    i("s_barrier")
    G.stamp(9)
    c("payload loads (after all waves' key loads are queued)")
    for g in range(2):
        i(f"buffer_load_dwordx4 v[{PAY+8*g}:{PAY+3+8*g}], v{116+g}, s[40:43], s99 offen sc1")
        i(f"buffer_load_dwordx4 v[{PAY+4+8*g}:{PAY+7+8*g}], v{116+g}, s[40:43], s99 offen offset:16 sc1")
    def mask_h1(g, cc):
        i(f"v_cmp_lt_i32 vcc, {64+cc}, v{118+g}")
        i("s_mov_b64 exec, vcc")
    i("s_waitcnt vmcnt(4)")
    for n in range(8):
        i(f"v_lshlrev_b32_sdwa v{NBV+n}, 2, v{KEY+n} dst_sel:DWORD dst_unused:UNUSED_PAD src0_sel:DWORD src1_sel:WORD_1")
    for n in range(8):
        i(f"s_mov_b64 exec, s[{MSK+2*n}:{MSK+2*n+1}]")
        i(f"ds_add_rtn_u32 v{RNK+n}, v{NBV+n}, v126 offset:{CNT_R}")
    unmask()
    i("s_cmp_eq_u32 s96, 0")
    i("s_cbranch_scc1 K2_SK_PA")
    for g in range(2):
        i(f"buffer_load_dwordx4 v[{PAY+16+8*g}:{PAY+19+8*g}], v{116+g}, s[40:43], s99 offen offset:512 sc1")
        i(f"buffer_load_dwordx4 v[{PAY+20+8*g}:{PAY+23+8*g}], v{116+g}, s[40:43], s99 offen offset:528 sc1")
    for n in range(8, 16):
        i(f"v_lshlrev_b32_sdwa v{NBV+n}, 2, v{KEY+n} dst_sel:DWORD dst_unused:UNUSED_PAD src0_sel:DWORD src1_sel:WORD_1")
        mask_h1((n>>2)&1, n&3)
        i(f"ds_add_rtn_u32 v{RNK+n}, v{NBV+n}, v126 offset:{CNT_R}")
        unmask()
    e("K2_SK_PA:")
    i("s_cmp_eq_u32 s90, 0")
    i("s_cbranch_scc1 K2_F_SKIP")
    c("first round: wc loads (wave 13), max len, select frag")
    i("s_cmp_lg_u32 s3, 13")
    i("s_cbranch_scc1 K2_NOWC")
    i("v_lshrrev_b32 v11, 4, v1              ; kg")
    i("v_lshl_add_u32 v11, v9, 2, v11")
    i("v_lshlrev_b32 v11, 1, v11")
    i("s_lshl_b32 s97, s28, 6")
    for k in range(4):
        i(f"buffer_load_ushort v{112+k}, v11, s[56:59], s97 offen offset:{k*256}")
    e("K2_NOWC:")
    i("v_mov_b32 v11, 0")
    i("s_mov_b32 s98, 0x00010001")
    i("s_mov_b32 s99, 0x00010001")
    i("s_mov_b64 exec, s[98:99]")
    i(f"ds_max_u32 v11, v123 offset:{MISC_R}")
    unmask()
    c("select frag: lane (i,kg): kg == i>>2 -> reg[i&3] = 1.0 (low half)")
    i("v_lshrrev_b32 v10, 4, v1")
    i("v_bfe_u32 v11, v1, 2, 2")
    i("v_cmp_eq_u32 s[100:101], v10, v11")
    i("v_and_b32 v10, 3, v1")
    i("v_mov_b32 v11, 0x3f80")
    for r in range(4):
        i(f"v_cmp_eq_u32 vcc, {r}, v10")
        i("s_and_b64 vcc, vcc, s[100:101]")
        i("s_nop 1")
        i(f"v_cndmask_b32 v{16+r}, 0, v11, vcc")
    e("K2_F_SKIP:")
    i("s_waitcnt lgkmcnt(0)")
    i("s_barrier")
    G.stamp(10)
    i("s_cmp_lg_u32 s3, 15")
    i("s_cbranch_scc1 K2_S_ELSE")
    i("v_lshlrev_b32 v10, 4, v1              ; lane*16")
    i(f"ds_read_b128 v[100:103], v10 offset:{CNT_R}")
    i(f"v_cmp_gt_u32 s[100:101], {NN//4}, v1")
    i("s_waitcnt lgkmcnt(0)")
    for k in range(4):
        i(f"v_add_u32 v{104+k}, 3, v{100+k}")
        i(f"v_lshrrev_b32 v{104+k}, 2, v{104+k}   ; q")
        i(f"v_min_u32 v{108+k}, 63, v{104+k}")
        i(f"v_lshlrev_b32 v{108+k}, 2, v{108+k}   ; bin*4")
    i("s_mov_b64 exec, s[100:101]")
    for k in range(4):
        i(f"ds_add_rtn_u32 v{112+k}, v{108+k}, v126 offset:{H2_R}")
    unmask()
    i(f"ds_read_b32 v116, v3 offset:{H2_R}")
    i("s_waitcnt lgkmcnt(0)")
    G.wave_scan(116)
    i(f"v_sub_u32 v116, {NN}, v116")
    for k in range(4):
        i(f"ds_bpermute_b32 v{120+k}, v{108+k}, v116")
    i("s_waitcnt lgkmcnt(0)")
    i("s_mov_b64 exec, s[100:101]")
    for k in range(4):
        i(f"v_add_u32 v{120+k}, v{120+k}, v{112+k}   ; pos")
        i(f"v_lshlrev_b32 v{108+k}, 2, v{120+k}")
        i(f"v_add_u32 v124, {k}, v3")
        i(f"ds_write_b32 v{108+k}, v124 offset:{ORDER_R}")
        i(f"ds_write_b32 v{108+k}, v{104+k} offset:{QS_R}")
    unmask()
    i("v_lshlrev_b32 v124, 5, v1")
    i(f"v_min_u32 v124, {(NG-1)*32}, v124")
    i(f"ds_read_b128 v[100:103], v124 offset:{QS_R}")
    i(f"ds_read_b128 v[112:115], v124 offset:{QS_R+16}")
    i(f"v_cmp_gt_u32 vcc, {NG}, v1")
    for k in range(4):
        i(f"v_lshrrev_b32 v{108+k}, 3, v{120+k}")
        i(f"v_lshlrev_b32 v{108+k}, 2, v{108+k}   ; (pos>>3)*4")
    i("s_waitcnt lgkmcnt(0)")
    i("v_max3_u32 v116, v100, v101, v102")
    i("v_max3_u32 v117, v103, v112, v113")
    i("v_max3_u32 v116, v116, v114, v115")
    i("v_max_u32 v116, v116, v117")
    i("v_cndmask_b32 v116, 0, v116, vcc")
    i("v_mov_b32 v117, v116")
    G.wave_scan(117)
    i("v_sub_u32 v116, v117, v116            ; exclusive")
    i("v_cndmask_b32 v117, -1, v117, vcc")
    for k in range(4):
        i(f"ds_bpermute_b32 v{104+k}, v{108+k}, v116")
    i(f"ds_write_b32 v3, v117 offset:{GST_R}")
    for k in range(4):
        i(f"v_and_b32 v{120+k}, 7, v{120+k}       ; gamma")
        i(f"v_lshlrev_b32 v{120+k}, 3, v{120+k}")
    i("s_waitcnt lgkmcnt(0)")
    for k in range(4):
        i(f"v_lshl_add_u32 v{100+k}, v{104+k}, 8, v{120+k}")
    i("s_mov_b64 exec, s[100:101]")
    i(f"ds_write_b128 v10, v[100:103] offset:{NBASE_R}")
    unmask()
    i("s_branch K2_S_SKIP")
    e("K2_S_ELSE:")
    i("s_cmp_eq_u32 s90, 0")
    i("s_cbranch_scc1 K2_S_SKIP")
    i("s_cmp_lg_u32 s3, 14")
    i("s_cbranch_scc1 K2_S_NOT14")
    c("wave 14 polls the T counter of this quarter")
    i("s_lshl_b32 s97, s28, 4")
    i("s_mov_b32 s99, 0")
    i("v_mov_b32 v10, 0")
    i("s_mov_b64 exec, 1")
    e("K2_POLLT:")
    i("buffer_load_dword v11, v10, s[60:63], s97 offen offset:192 sc1")
    i("s_add_u32 s99, s99, 1")
    i("s_waitcnt vmcnt(0)")
    i("v_cmp_eq_u32 vcc, 0, v11")
    i("s_cbranch_vccz K2_POLLT_OK")
    i("s_sleep 2")
    i(f"s_cmp_lt_u32 s99, {SPIN_MAX}")
    i("s_cbranch_scc1 K2_POLLT")
    e("K2_POLLT_OK:")
    unmask()
    i("s_branch K2_S_SKIP")
    e("K2_S_NOT14:")
    i("s_cmp_lg_u32 s3, 13")
    i("s_cbranch_scc1 K2_S_SKIP")
    i("s_waitcnt vmcnt(0)")
    i(f"s_mov_b32 s98, 0x{G.NLOG2E:08x}")
    for k in range(4):
        i(f"v_lshlrev_b32 v{112+k}, 16, v{112+k}")
        i(f"v_mul_f32 v{112+k}, s98, v{112+k}")
    i("v_cvt_pk_bf16_f32 v112, v112, v113")
    i("v_cvt_pk_bf16_f32 v113, v114, v115")
    i("v_and_b32 v10, 8, v1")
    i("v_cmp_eq_u32 vcc, 0, v10")
    i("v_lshlrev_b32 v10, 4, v1")
    i("s_nop 0")
    i("v_cndmask_b32 v12, 0, v112, vcc")
    i("v_cndmask_b32 v13, 0, v113, vcc")
    i("v_cndmask_b32 v14, v112, 0, vcc")
    i("v_cndmask_b32 v15, v113, 0, vcc")
    i(f"ds_write_b128 v10, v[12:15] offset:{WCF_R}")
    e("K2_S_SKIP:")
    i("s_mov_b32 s90, 0")
    i("s_waitcnt lgkmcnt(0)")
    i("s_barrier")
    G.stamp(11)
    c("v7 = GST incl (lanes>=25 -> -1); s83 = S_tot ; NBASE reads")
    i(f"ds_read_b32 v7, v3 offset:{GST_R}")
    i("v_lshlrev_b32 v10, 4, v1")
    i(f"ds_read_b128 v[12:15], v10 offset:{WCF_R}")
    for n in range(8):
        i(f"s_mov_b64 exec, s[{MSK+2*n}:{MSK+2*n+1}]")
        i(f"ds_read_b32 v{NBV+n}, v{NBV+n} offset:{NBASE_R}")
    unmask()
    i("s_cmp_eq_u32 s96, 0")
    i("s_cbranch_scc1 K2_SK_PB1")
    for n in range(8, 16):
        mask_h1((n>>2)&1, n&3)
        i(f"ds_read_b32 v{NBV+n}, v{NBV+n} offset:{NBASE_R}")
        unmask()
    e("K2_SK_PB1:")
    for n in range(8):
        i(f"v_lshlrev_b32_sdwa v{KEY+n}, 7, v{KEY+n} dst_sel:DWORD dst_unused:UNUSED_PAD src0_sel:DWORD src1_sel:WORD_0")
    i("s_waitcnt lgkmcnt(0) vmcnt(0)")
    i(f"v_readlane_b32 s83, v7, {NG-1}")
    for n in range(8):
        i(f"v_lshl_add_u32 v{NBV+n}, v{RNK+n}, 6, v{NBV+n}")
        i(f"v_lshrrev_b32 v{RNK+n}, 1, v{NBV+n}")
    i(f"s_cmp_gt_u32 s83, {CAP//32}")
    i("s_cbranch_scc0 K2_FIT")
    i(f"s_mov_b32 s81, {RSMALL}")
    i("s_barrier")
    i("s_branch K2_ROUND")
    e("K2_FIT:")
    for n in range(8):
        i(f"s_mov_b64 exec, s[{MSK+2*n}:{MSK+2*n+1}]")
        i(f"ds_write_b32 v{RNK+n}, v{KEY+n} offset:{SRC_O}")
        i(f"ds_write_b64 v{NBV+n}, v[{PAY+2*n}:{PAY+2*n+1}] offset:{EAT_O}")
    unmask()
    i("s_cmp_eq_u32 s96, 0")
    i("s_cbranch_scc1 K2_SK_PB2")
    for n in range(8, 16):
        i(f"v_lshlrev_b32_sdwa v{KEY+n}, 7, v{KEY+n} dst_sel:DWORD dst_unused:UNUSED_PAD src0_sel:DWORD src1_sel:WORD_0")
        i(f"v_lshl_add_u32 v{NBV+n}, v{RNK+n}, 6, v{NBV+n}")
        i(f"v_lshrrev_b32 v{RNK+n}, 1, v{NBV+n}")
        mask_h1((n>>2)&1, n&3)
        i(f"ds_write_b32 v{RNK+n}, v{KEY+n} offset:{SRC_O}")
        i(f"ds_write_b64 v{NBV+n}, v[{PAY+2*n}:{PAY+2*n+1}] offset:{EAT_O}")
        unmask()
    e("K2_SK_PB2:")
    BOP = 12; SOP = 16; GS = (20, 36, 52); DD = 68; EA = 84; SR = 100; CC = 104
    DEN = 108; NUM = 112; PART = 116
    i("s_mul_i32 s84, s83, s3")
    i("s_lshr_b32 s84, s84, 4")
    i("s_add_u32 s85, s3, 1")
    i("s_mul_i32 s85, s83, s85")
    i("s_lshr_b32 s85, s85, 4")
    i("s_mov_b32 s47, 0")
    i("v_cmp_ge_u32 vcc, s84, v7")
    i("s_bcnt1_i32_b64 s86, vcc               ; group")
    i("s_lshl_b32 s97, s84, 7")
    i(f"s_add_u32 s97, s97, {SRC_O}")
    i("v_lshl_add_u32 v4, v8, 2, s97")
    i("s_lshl_b32 s97, s84, 8")
    i(f"s_add_u32 s97, s97, {EAT_O}")
    i("v_bfe_u32 v5, v1, 2, 2")
    i("v_lshl_add_u32 v5, v5, 4, s97")
    c("g0 start -> s92 ; nonowner flag s46")
    i("s_sub_u32 s97, s86, 1")
    i("s_max_i32 s97, s97, 0")
    i("s_nop 0")
    i("v_readlane_b32 s92, v7, s97")
    i("s_cmp_eq_u32 s86, 0")
    i("s_cselect_b32 s92, 0, s92")
    i("s_cmp_lt_u32 s92, s84")
    i("s_cselect_b32 s46, 1, 0")
    i("s_lshl_b32 s97, s86, 5")
    i("v_lshl_add_u32 v124, v8, 2, s97")
    i(f"ds_read_b32 v127, v124 offset:{ORDER_R}")
    i("s_waitcnt lgkmcnt(0)")
    for r in range(16): i(f"v_mov_b32 v{EA+r}, 0")
    i("s_barrier")
    G.stamp(12)
    if G.STAMP:
        i("s_memtime s[4:5]")
        i("s_waitcnt lgkmcnt(0)")
        i("s_mov_b32 s25, s4")
        i("s_mov_b32 s24, s83")
    i("s_cmp_ge_u32 s84, s85")
    i("s_cbranch_scc1 K2_MAIN_END")
    def src_read(dst, step):
        i(f"ds_read2_b32 v[{dst}:{dst+1}], v4 offset0:{step*32} offset1:{step*32+8}")
        i(f"ds_read2_b32 v[{dst+2}:{dst+3}], v4 offset0:{step*32+16} offset1:{step*32+24}")
    def gather(gs, sr=SR):
        for r in range(4):
            i(f"v_add_u32 v{sr+r}, v{sr+r}, v2")
        for r in range(4):
            i(f"buffer_load_dwordx4 v[{gs+4*r}:{gs+4*r+3}], v{sr+r}, s[32:35], 0 offen{GSC}")
    def ea_reads(off):
        i("s_mov_b64 exec, s[44:45]")
        for r in range(4):
            i(f"ds_read_b128 v[{EA+4*r}:{EA+4*r+3}], v5 offset:{off + r*64}")
        unmask()
    src_read(SR, 0)
    src_read(DD, 1)
    i("s_waitcnt lgkmcnt(2)")
    gather(GS[0])
    i("s_waitcnt lgkmcnt(0)")
    gather(GS[1], DD)
    src_read(SR, 2)
    ea_reads(0)
    def setup_group():
        c("group setup: s86 = g, v127 = node id")
        i("v_readlane_b32 s87, v7, s86")
        i("s_waitcnt lgkmcnt(0)")
        i("v_lshl_add_u32 v6, v127, 7, v2")
        i(f"v_add_u32 v6, {DEN_O}, v6")
        i("v_lshlrev_b32 v11, 6, v127")
        i("v_lshl_add_u32 v11, v9, 3, v11")
        i(f"v_add_u32 v11, {APR_O}, v11")
        i(f"ds_read_b64 v[{CC}:{CC+1}], v11")
        i(f"ds_read_b128 v[{DEN}:{DEN+3}], v6")
        i(f"ds_read_b128 v[{NUM}:{NUM+3}], v6 offset:{NUM_D}")
        i("v_add_u32 v124, 32, v124")
        i(f"ds_read_b32 v127, v124 offset:{ORDER_R}")
        i("s_waitcnt lgkmcnt(3)")
        i(f"v_and_b32 v{CC+3}, 0xffff0000, v{CC+1}")
        i(f"v_lshlrev_b32 v{CC+2}, 16, v{CC+1}")
        i(f"v_and_b32 v{CC+1}, 0xffff0000, v{CC}")
        i(f"v_lshlrev_b32 v{CC}, 16, v{CC}")
    setup_group()
    i("s_mov_b32 s91, s87                    ; g0 end")
    i("s_min_u32 s87, s87, s85")
    G.stamp(13)
    i("s_cmp_eq_u32 s46, 0")
    i("s_cbranch_scc1 K2_LOOP")
    i("s_waitcnt lgkmcnt(0)")
    for r in range(8): i(f"v_mov_b32 v{DEN+r}, 0")
    e("K2_LOOP:")
    for u in range(3):
        X = GS[u]; Z = GS[(u+2) % 3]
        e(f"K2_STEP{u}:")
        i("s_waitcnt lgkmcnt(0)")
        for r in range(4):
            if not X_NOM: i(f"v_mfma_f32_16x16x32_bf16 v[{DD+4*r}:{DD+4*r+3}], v[{EA+4*r}:{EA+4*r+3}], v[{BOP}:{BOP+3}], v[{CC}:{CC+3}]")
        i("s_waitcnt vmcnt(4)")
        for r in range(4):
            if not X_NOM: i(f"v_mfma_f32_16x16x32_bf16 v[{DD+4*r}:{DD+4*r+3}], v[{SOP}:{SOP+3}], v[{X+4*r}:{X+4*r+3}], v[{DD+4*r}:{DD+4*r+3}]")
        if not X_NOG: gather(Z)
        src_read(SR, u+3)
        ea_reads((u+1)*256)
        if u == 2:
            i("v_add_u32 v4, 384, v4")
            i("v_add_u32 v5, 768, v5")
        for r in range(16):
            if not X_NOT: i(f"v_exp_f32 v{DD+r}, v{DD+r}")
        if PK1:
            for r in range(0, 16, 2): i(f"v_pk_add_f32 v[{DD+r}:{DD+r+1}], v[{DD+r}:{DD+r+1}], 1.0 op_sel_hi:[1,0]")
        else:
            for r in range(16): i(f"v_add_f32 v{DD+r}, 1.0, v{DD+r}")
        for r in range(16):
            if not X_NOT: i(f"v_rcp_f32 v{DD+r}, v{DD+r}")
        i("s_add_u32 s84, s84, 1")
        for r in range(4):
            if PKD:
                for b in range(0, 4, 2):
                    i(f"v_pk_add_f32 v[{DEN+b}:{DEN+b+1}], v[{DEN+b}:{DEN+b+1}], v[{DD+4*r+b}:{DD+4*r+b+1}]")
            else:
                for b in range(4):
                    i(f"v_add_f32 v{DEN+b}, v{DEN+b}, v{DD+4*r+b}")
            if PKN:
                for b in range(0, 4, 2):
                    i(f"v_pk_fma_f32 v[{NUM+b}:{NUM+b+1}], v[{DD+4*r+b}:{DD+4*r+b+1}], v[{X+4*r+b}:{X+4*r+b+1}], v[{NUM+b}:{NUM+b+1}]")
            else:
                for b in range(4):
                    i(f"v_fmac_f32 v{NUM+b}, v{DD+4*r+b}, v{X+4*r+b}")
        i("s_cmp_ge_u32 s84, s87")
        i(f"s_cbranch_scc1 K2_BND{u}")
        if u == 2: i("s_branch K2_LOOP")
    for u in range(3):
        e(f"K2_BND{u}:")
        i("s_cmp_eq_u32 s46, 0")
        i(f"s_cbranch_scc1 K2_OWN{u}")
        for r in range(8): i(f"v_mov_b32 v{PART+r}, v{DEN+r}")
        i("v_mov_b32 v10, v6")
        i("s_mov_b32 s46, 0")
        i("s_mov_b32 s47, 1")
        i(f"s_branch K2_NXT{u}")
        e(f"K2_OWN{u}:")
        i(f"ds_write_b128 v6, v[{DEN}:{DEN+3}]")
        i(f"ds_write_b128 v6, v[{NUM}:{NUM+3}] offset:{NUM_D}")
        e(f"K2_NXT{u}:")
        i("s_cmp_ge_u32 s84, s85")
        i("s_cbranch_scc1 K2_MAIN_END")
        i("s_add_u32 s86, s86, 1")
        setup_group()
        i("s_min_u32 s87, s87, s85")
        i(f"s_branch K2_STEP{(u+1)%3}")
    e("K2_MAIN_END:")
    G.stamp(14)
    if G.STAMP:
        i("s_memtime s[4:5]")
        i("s_waitcnt lgkmcnt(0)")
        i("s_sub_u32 s25, s4, s25")
    i("v_mov_b32 v11, 0")
    i(f"ds_read_b32 v11, v11 offset:{MISC_R}")
    c("final-pass loads (used only if this was the last round)")
    i("s_waitcnt vmcnt(0)")
    i("v_lshlrev_b32 v4, 3, v0               ; tid*8")
    i("v_lshrrev_b32 v5, 3, v0               ; n")
    i("v_lshlrev_b32 v6, 8, v5")
    i("v_lshl_add_u32 v6, v9, 3, v6")
    i("s_lshl_b32 s98, s30, 8")
    i("s_lshl_b32 s99, s28, 6")
    i("s_add_u32 s98, s98, s99")
    i("s_mov_b32 s97, 8192")
    i("buffer_load_dwordx2 v[20:21], v4, s[36:39], 0 offen sc1")
    i("buffer_load_dwordx2 v[28:29], v6, s[48:51], s98 offen")
    i("s_add_u32 s99, s98, 32768")
    i("buffer_load_dwordx2 v[24:25], v4, s[36:39], s97 offen sc1")
    i("buffer_load_dwordx2 v[30:31], v6, s[48:51], s99 offen")
    i("s_waitcnt lgkmcnt(0)")
    i("v_readfirstlane_b32 s82, v11")
    i("s_barrier")
    G.stamp(15)
    i("s_cmp_eq_u32 s47, 0")
    i("s_cbranch_scc1 K2_NOPART")
    c("fast iff g0start >= prev wave start && g0end <= own end")
    i("s_sub_u32 s97, s3, 1")
    i("s_mul_i32 s97, s83, s97")
    i("s_lshr_b32 s97, s97, 4")
    i("s_cmp_lt_u32 s92, s97")
    i("s_cbranch_scc1 K2_SLOWPART")
    i("s_cmp_gt_u32 s91, s85")
    i("s_cbranch_scc1 K2_SLOWPART")
    i(f"ds_read_b128 v[{DEN}:{DEN+3}], v10")
    i(f"ds_read_b128 v[{NUM}:{NUM+3}], v10 offset:{NUM_D}")
    i("s_waitcnt lgkmcnt(0)")
    for r in range(8): i(f"v_add_f32 v{DEN+r}, v{DEN+r}, v{PART+r}")
    i(f"ds_write_b128 v10, v[{DEN}:{DEN+3}]")
    i(f"ds_write_b128 v10, v[{NUM}:{NUM+3}] offset:{NUM_D}")
    i("s_branch K2_NOPART")
    e("K2_SLOWPART:")
    for r in range(4):
        i(f"ds_add_f32 v10, v{PART+r} offset:{4*r}")
        i(f"ds_add_f32 v10, v{PART+4+r} offset:{NUM_D+4*r}")
    e("K2_NOPART:")
    i("s_waitcnt lgkmcnt(0)")
    i("s_barrier")
    i("s_add_u32 s80, s80, s81")
    i("s_cmp_lt_u32 s80, s82")
    i("s_cbranch_scc1 K2_ROUND")
    G.stamp(16)
    i("v_lshlrev_b32 v4, 4, v0")
    i(f"v_add_u32 v4, {DEN_O}, v4")
    for it in range(2):
        i(f"ds_read_b128 v[{32+8*it}:{35+8*it}], v4 offset:{it*16384}")
        i(f"ds_read_b128 v[{36+8*it}:{39+8*it}], v4 offset:{it*16384+NUM_D}")
    i("s_mov_b32 s83, 0x358637bd              ; 1e-6")
    i("s_waitcnt vmcnt(0) lgkmcnt(0)")
    for it in range(2):
        d = 32 + 8*it
        for b in range(4):
            i(f"v_add_f32 v{d+b}, s83, v{d+b}")
        for b in range(4):
            i(f"v_rcp_f32 v{d+b}, v{d+b}")
        for b in range(4):
            u = 48 + b; ur = 20 + 4*it + (b >> 1)
            if (b & 1) == 0: i(f"v_lshlrev_b32 v{u}, 16, v{ur}")
            else:            i(f"v_and_b32 v{u}, 0xffff0000, v{ur}")
            i(f"v_fmac_f32 v{u}, v{d+b}, v{d+4+b}")
            i(f"v_max_f32 v{u}, 0, v{u}")
            xr = 28 + 2*it + (b >> 1)
            if (b & 1) == 0: i(f"v_lshlrev_b32 v14, 16, v{xr}")
            else:            i(f"v_and_b32 v14, 0xffff0000, v{xr}")
            i(f"v_add_f32 v{u}, v14, v{u}")
        o = 52 + 2*it
        i(f"v_cvt_pk_bf16_f32 v{o}, v48, v49")
        i(f"v_cvt_pk_bf16_f32 v{o+1}, v50, v51")
        i(f"v_add_u32 v14, {128*it}, v5")
        i("v_cmp_gt_u32 vcc, s31, v14")
        i("s_mov_b64 exec, vcc")
        i(f"buffer_store_dwordx2 v[{o}:{o+1}], v6, s[52:55], s{98+it} offen")
        unmask()
    if G.STAMP: i("s_waitcnt vmcnt(0)")
    G.stamp(17)
    G.stamp_out()
    e("KF_END:")
    i("s_endpgm")
```

```python
import sys, math, os

N = 12500; E = 400000; D = 128
NPB = 196; NB = 64
P = 128; CH = 3125; CHP = 3136
KEYO = 272; PAYO = KEYO + CHP * 4
KP_IMG = 38016
DUMMY_ROW = 12799
TQ = 12800 * 128
U_OFF = 8 << 20; UWG = 208 * 64
KP_OFF = 16 << 20;   KP_SZ = P * KP_IMG
MAGIC196 = (2**32 + 195) // 196
NLOG2E = 0xBFB8AA3B
DUMMY_VAL = 0x7F7F

L = []
def e(s=""): L.append(s)
def c(s): L.append("    ; " + s)
def i(s): L.append("    " + s)

def srd(base, ptr, off, size):
    if off:
        i(f"s_add_u32 s{base}, s{ptr}, {off}")
        i(f"s_addc_u32 s{base+1}, s{ptr+1}, 0")
    else:
        i(f"s_mov_b32 s{base}, s{ptr}")
        i(f"s_mov_b32 s{base+1}, s{ptr+1}")
    i(f"s_mov_b32 s{base+2}, {size}")
    i(f"s_mov_b32 s{base+3}, 0x00020000")

def wave_scan(v):
    for sh in (1, 2, 4, 8):
        i("s_nop 1")
        i(f"v_add_u32_dpp v{v}, v{v}, v{v} row_shr:{sh} row_mask:0xf bank_mask:0xf bound_ctrl:0")
    i("s_nop 1")
    i(f"v_add_u32_dpp v{v}, v{v}, v{v} row_bcast:15 row_mask:0xa bank_mask:0xf")
    i("s_nop 1")
    i(f"v_add_u32_dpp v{v}, v{v}, v{v} row_bcast:31 row_mask:0xc bank_mask:0xf")

STAMP = int(os.environ.get("STAMP", "0"))
STAMP_OFF = 24 << 20
NSTAMP = 20
def stamp(k):
    if not STAMP: return
    assert k < NSTAMP
    i("s_memrealtime s[4:5]")
    i("s_waitcnt lgkmcnt(0)")
    i(f"s_mov_b32 s{6+k}, s4")
def stamp_early(r):
    if not STAMP: return
    i(f"s_memrealtime s[{r}:{r+1}]")
def stamp_fix(r):
    if not STAMP: return
    for k in range(1, NSTAMP): i(f"s_mov_b32 s{6+k}, 0")
    i(f"s_mov_b32 s6, s{r}")
def stamp_out():
    if not STAMP: return
    i("s_mov_b64 exec, 1")
    srd(28, 26, STAMP_OFF, 1 << 20)
    i("s_lshl_b32 s32, s2, 4")
    i(f"s_add_u32 s32, s32, s3")
    i("s_lshl_b32 s32, s32, 7")
    i("v_mov_b32 v1, 0")
    for k in range(NSTAMP):
        i(f"v_mov_b32 v2, s{6+k}")
        i(f"buffer_store_dword v2, v1, s[28:31], s32 offen offset:{4*k}")
    i("s_waitcnt vmcnt(0)")

def kernel_header(name):
    e(f".globl {name}")
    e(".p2align 8")
    e(f".type {name},@function")
    e(f"{name}:")

def kernel_desc(name, vgpr, sgpr):
    acc = (vgpr + 3) // 4 * 4
    e(f".amdhsa_kernel {name}")
    e(f"  .amdhsa_next_free_vgpr {vgpr}")
    e(f"  .amdhsa_next_free_sgpr {sgpr}")
    e(f"  .amdhsa_accum_offset {acc}")
    e("  .amdhsa_group_segment_fixed_size 0")
    e("  .amdhsa_kernarg_size 96")
    e("  .amdhsa_user_sgpr_count 2")
    e("  .amdhsa_user_sgpr_kernarg_segment_ptr 1")
    e("  .amdhsa_system_sgpr_workgroup_id_x 1")
    e(".end_amdhsa_kernel")

def load_kernargs():
    i("s_load_dwordx16 s[4:19], s[0:1], 0")
    i("s_load_dwordx8 s[20:27], s[0:1], 64")

KNAME = "gather_scatter__edge_featured_mpnn_gatedgcn__graph_kernel"
def main():
    import kf
    G = sys.modules[__name__]
    hdr = open("gather_scatter__edge_featured_mpnn_gatedgcn__graph.s.ref").read().splitlines()
    for ln in hdr:
        if ln.startswith(";") and "@launch" not in ln and "Override" not in ln and "grid=ceil" not in ln:
            e(ln)
    e(f"; @launch grid=(256,1,1) block=(1024,1,1) lds={kf.LDS_TOTAL}")
    e('.amdgcn_target "amdgcn-amd-amdhsa--gfx950"')
    e(".text")
    kf.gen(G)
    e('.section .rodata,"a"')
    e(".p2align 6")
    kernel_desc(KNAME, kf.VGPRS, 102)
    out = sys.argv[1] if len(sys.argv) > 1 else "gather_scatter__edge_featured_mpnn_gatedgcn__graph.s"
    open(out, "w").write("\n".join(L) + "\n")

if __name__ == "__main__":
    sys.modules["gen"] = sys.modules[__name__]
    main()
```
